```python
import torch

def _softmax(x, axis=-1):
    return torch.softmax(x, dim=axis)
def _gelu(x):
    return torch.nn.functional.gelu(x, approximate="tanh")
def _silu(x):
    return torch.nn.functional.silu(x)
def _sigmoid(x):
    return torch.sigmoid(x)
def _layernorm(x, axis=-1, eps=1e-5):
    m = x.mean(dim=axis, keepdim=True)
    v = x.var(dim=axis, keepdim=True, unbiased=False)
    return (x - m) / torch.sqrt(v + eps)
def _scatter_add(tgt, idx, src, axis=0):
    return tgt.clone().index_add_(axis, idx, src)
def _segment_sum(src, seg, n):
    out = torch.zeros((n,) + src.shape[1:], dtype=src.dtype)
    return out.index_add_(0, seg, src)
def _pad(x, pw):
    flat = tuple(v for pair in reversed(pw) for v in pair)
    return torch.nn.functional.pad(x, flat)

kernel_name = 'recurrent_scan__sliding_block_cached__glu_gated_reglu__decode'

def setup_inputs():

    _w = (lambda a: (lambda t: t.to(torch.bfloat16) if t.is_floating_point() else t)(torch.as_tensor(a)))
    def _A_setup():
        B, Sq, D = 1, 1, 448
        Hq, Hkv, Sk, Dh = 16, 8, 65536, 256
        assert Hq % Hkv == 0, (Hq, Hkv)
        return {
            "x": _w((lambda *s: torch.randn(*s, dtype=torch.bfloat16) * 0.2)(B, Sq, D)),
            "k_cache": _w((lambda *s: torch.randn(*s, dtype=torch.bfloat16) * 1.6)(B, Hkv, Sk, Dh)),
            "v_cache": _w((lambda *s: torch.randn(*s, dtype=torch.bfloat16) * 1.6)(B, Hkv, Sk, Dh)),
            "wq": _w((lambda *s: torch.randn(*s, dtype=torch.bfloat16) * 1.6)(D, Hq * Dh) * (D ** -0.5)),
            "wo": _w((lambda *s: torch.randn(*s, dtype=torch.bfloat16) * 1.6)(Hq * Dh, D) * ((Hq * Dh) ** -0.5)),
        }
    _A_in = _A_setup()

    def _B_setup():
        B, S, D, F = 1, 1, 448, 1792
        return {
            "x": _w((lambda *s: torch.randn(*s, dtype=torch.bfloat16) * 0.2)(B, S, D)),
            "W_gate": _w((lambda *s: torch.randn(*s, dtype=torch.bfloat16) * 0.8)(D, F) * (2.0 / D) ** 0.5),
            "W_up": _w((lambda *s: torch.randn(*s, dtype=torch.bfloat16) * 0.8)(D, F) * (2.0 / D) ** 0.5),
            "W_down": _w((lambda *s: torch.randn(*s, dtype=torch.bfloat16) * 0.8)(F, D) * (1.0 / F) ** 0.5),
        }
    _B_in = _B_setup()

    return {
        "A_x": _A_in["x"],
        "A_k_cache": _A_in["k_cache"],
        "A_v_cache": _A_in["v_cache"],
        "A_wq": _A_in["wq"],
        "A_wo": _A_in["wo"],
        "B_x": _B_in["x"],
        "B_W_gate": _B_in["W_gate"],
        "B_W_up": _B_in["W_up"],
        "B_W_down": _B_in["W_down"],
    }

def reference(A_x, A_k_cache, A_v_cache, A_wq, A_wo, B_x, B_W_gate, B_W_up, B_W_down):
    def _A_ref(x, k_cache, v_cache, wq, wo):
        B, Sq, D = x.shape
        Hq, Dh = 16, 256
        Hkv, Sk = k_cache.shape[1], k_cache.shape[2]
        W = min(4096, max(256, Sk // 4))
        rep = Hq // Hkv
        q = (lambda x, *d: x.permute(*d))((x @ wq).reshape(B, Sq, Hq, Dh), 0, 2, 1, 3)
        k = (lambda x, n, axis: torch.repeat_interleave(x, n, dim=axis))(k_cache[:, :, Sk - W:, :], rep, axis=1)
        v = (lambda x, n, axis: torch.repeat_interleave(x, n, dim=axis))(v_cache[:, :, Sk - W:, :], rep, axis=1)
        scores = torch.einsum("bhqd,bhkd->bhqk", q, k) * (Dh ** -0.5)
        p = _softmax(scores, axis=-1)
        o = torch.einsum("bhqk,bhkd->bhqd", p, v)
        return (lambda x, *d: x.permute(*d))(o, 0, 2, 1, 3).reshape(B, Sq, Hq * Dh) @ wo

    def _B_ref(x, W_gate, W_up, W_down):
        gate = torch.einsum("bsd,df->bsf", x, W_gate)
        up = torch.einsum("bsd,df->bsf", x, W_up)
        gate = gate * (lambda x, dt: x.to(dt))(gate > 0, gate.dtype)
        h = gate * up
        return torch.einsum("bsf,fd->bsd", h, W_down)

    x = A_x
    xn = _layernorm(x, axis=-1)
    s = _A_ref(xn, A_k_cache, A_v_cache, A_wq, A_wo)
    g = _silu(_B_ref(xn, B_W_gate, B_W_up, B_W_down))
    return x + s * g
```

```python
NAME = "recurrent_scan__sliding_block_cached__glu_gated_reglu__decode"

class Asm:
    def __init__(self):
        self.lines = []
    def __call__(self, s):
        for l in s.strip("\n").split("\n"):
            self.lines.append("    " + l.strip() if not l.strip().endswith(":") else l.strip())
    def c(self, s):
        self.lines.append("    ; " + s)
    def text(self):
        return "\n".join(self.lines) + "\n"

def header(launches):
    out = []
    for l in launches:
        out.append("; " + l)
    out.append('.amdgcn_target "amdgcn-amd-amdhsa--gfx950"')
    out.append(".text")
    return "\n".join(out) + "\n"

def kernel_begin(label):
    return f".globl {label}\n.p2align 8\n.type {label},@function\n{label}:\n"

def descriptor(label, vgpr, sgpr, accum=None):
    if accum is None:
        accum = (vgpr + 3) // 4 * 4
    return f""".p2align 6
.amdhsa_kernel {label}
  .amdhsa_next_free_vgpr {vgpr}
  .amdhsa_next_free_sgpr {sgpr}
  .amdhsa_accum_offset {accum}
  .amdhsa_group_segment_fixed_size 0
  .amdhsa_kernarg_size 96
  .amdhsa_user_sgpr_count 2
  .amdhsa_user_sgpr_kernarg_segment_ptr 1
  .amdhsa_system_sgpr_workgroup_id_x 1
.end_amdhsa_kernel
"""

RODATA = '.section .rodata,"a"\n'
```

```python
import struct
import sys

sys.path.insert(0, "code")
from asmlib import *
import hazard

DPP = "row_mask:0xf bank_mask:0xf"


def f2u(x):
    return struct.unpack("<I", struct.pack("<f", x))[0]


WS_QP = 0x1C0000
QP_H = 0x2400
QP_COPY = 0x12000
WS_GP = 0x20000
WS_ML = 0x30000
WS_L2 = 0x38000
WS_OP = 0x40000
WS_S1 = 0x100000
WS_Y1 = 0x180000
WS_SIZE = 0x200000
TAG10 = 0x3FF
TAG8 = 0xFF

LDS_Q = 0
LDS_ML = 1024
LDS_FAST = 1280
LDS_O = 2048
LDS_SIZE = 2048 + 16384

SPIN_MAX = 1 << 16
FFN0 = 18

S_X, S_K, S_V, S_WQ, S_WO, S_WG, S_WU, S_WD, S_OUT, S_DBG, S_WS = 4, 6, 8, 10, 12, 16, 18, 20, 22, 24, 26
S_H, S_C, S_WAVE, S_T, S_E, S_T8 = 28, 29, 30, 31, 32, 33
S_CNT = 34
R_WS, R_A, R_B, R_C = 36, 40, 44, 48
S_MASK, S_CE, S_SPIN, S_FAST = 60, 61, 62, 63
S_XCC = 14
S_STAMP = 64
NSTAMP = 16


class Gen:
    def __init__(self, stamps=False, opt=None):
        self.a = Asm()
        self.stamps = stamps
        self.opt = opt or {}
        self.nlab = 0

    def lab(self, base):
        self.nlab += 1
        return f"L_{base}_{self.nlab}"

    def stamp(self, i):
        if self.stamps:
            self.a(f"s_memrealtime s[{S_STAMP+2*i}:{S_STAMP+2*i+1}]")

    def srd(self, r, base, off_sgpr, nbytes):
        a = self.a
        if off_sgpr is None:
            a(f"s_mov_b32 s{r}, s{base}")
            a(f"s_mov_b32 s{r+1}, s{base+1}")
        else:
            a(f"s_add_u32 s{r}, s{base}, s{off_sgpr}")
            a(f"s_addc_u32 s{r+1}, s{base+1}, 0")
        a(f"s_mov_b32 s{r+2}, {nbytes}")
        a(f"s_mov_b32 s{r+3}, 0x20000")

    def masks(self, vm, t0, t1):
        a = self.a
        a(f"v_and_b32 v{t0}, 1, v0")
        a(f"v_lshlrev_b32 v{t0}, 4, v{t0}")
        a(f"v_mov_b32 v{t1}, 0xffff")
        a(f"v_lshlrev_b32 v{t0}, v{t0}, v{t1}")
        a(f"v_bfe_u32 v{t1}, v0, 1, 2")
        for j in range(4):
            a(f"v_cmp_eq_u32 vcc, {j}, v{t1}")
            a(f"v_cndmask_b32 v{vm+j}, 0, v{t0}, vcc")

    def tagcheck(self, grans, vacc, retry, wide):
        a = self.a
        st, mk = (S_T, TAG10) if wide else (S_T8, TAG8)
        first = True
        for g in grans:
            for j in range(4):
                a(f"v_xor_b32 v{g+j}, s{st}, v{g+j}")
            if first:
                a(f"v_or3_b32 v{vacc}, v{g}, v{g+1}, v{g+2}")
                a(f"v_or_b32 v{vacc}, v{vacc}, v{g+3}")
                first = False
            else:
                a(f"v_or3_b32 v{vacc}, v{vacc}, v{g}, v{g+1}")
                a(f"v_or3_b32 v{vacc}, v{vacc}, v{g+2}, v{g+3}")
        a(f"v_and_b32 v{vacc}, {mk}, v{vacc}")
        a(f"v_cmp_ne_u32 vcc, 0, v{vacc}")
        a(f"s_cbranch_vccnz {retry}")

    def poll(self, name, issue, grans, vacc, first_issued=False, wide=True, st1=None):
        a = self.a
        top, retry, ok = self.lab(name + "_top"), self.lab(name + "_retry"), self.lab(name + "_ok")
        a(f"s_mov_b32 s{S_SPIN}, 0")
        if first_issued:
            chk = self.lab(name + "_chk")
            a(f"s_branch {chk}")
        else:
            a(f"s_branch {top}")
        a(f"{retry}:")
        a(f"s_add_u32 s{S_SPIN}, s{S_SPIN}, 1")
        a(f"s_cmp_ge_u32 s{S_SPIN}, {SPIN_MAX}")
        a(f"s_cbranch_scc1 {ok}")
        a(f"{top}:")
        issue()
        if first_issued:
            a(f"{chk}:")
        a("s_waitcnt vmcnt(0)")
        if self.stamps and st1 is not None:
            l = self.lab("st")
            a(f"s_cmp_lg_u32 s{S_SPIN}, 0")
            a(f"s_cbranch_scc1 {l}")
            self.stamp(st1)
            a(f"{l}:")
        self.tagcheck(grans, vacc, retry, wide)
        a(f"{ok}:")

    def tag4(self, r, vT):
        for j in range(4):
            self.a(f"v_and_or_b32 v{r+j}, v{r+j}, s{S_MASK}, v{vT}")

    def pub(self, ins):
        a = self.a
        if self.opt.get("nofast"):
            a(ins + " sc1")
            return
        l1, l2 = self.lab("pf"), self.lab("pj")
        a(f"s_cmp_eq_u32 s{S_FAST}, 1")
        a(f"s_cbranch_scc1 {l1}")
        a(ins + " sc1")
        a(f"s_branch {l2}")
        a(f"{l1}:")
        a(ins)
        a(f"{l2}:")

    def xrow(self, op, regs, tmps):
        a = self.a
        for sw in ("v_permlane16_swap_b32", "v_permlane32_swap_b32"):
            for r, t in zip(regs, tmps):
                a(f"v_mov_b32 v{t}, v{r}")
            for r, t in zip(regs, tmps):
                a(f"{sw} v{r}, v{t}")
            for r, t in zip(regs, tmps):
                a(f"{op} v{r}, v{r}, v{t}")

    def tr4(self, r):
        a = self.a
        a(f"v_permlane32_swap_b32 v{r}, v{r+2}")
        a(f"v_permlane32_swap_b32 v{r+1}, v{r+3}")
        a(f"v_add_f32 v{r}, v{r}, v{r+2}")
        a(f"v_add_f32 v{r+1}, v{r+1}, v{r+3}")
        a(f"v_permlane16_swap_b32 v{r}, v{r+1}")
        a(f"v_add_f32 v{r}, v{r}, v{r+1}")

    def rnd_bf16(self, r):
        self.a(f"v_cvt_pk_bf16_f32 v{r}, v{r}, v{r}")
        self.a(f"v_and_b32 v{r}, 0xffff0000, v{r}")

    def leave(self, nbar):
        if self.stamps:
            for _ in range(nbar):
                self.a("s_barrier")
            self.a("s_branch L_exit")
        else:
            self.a("s_endpgm")

    def build(self):
        a = self.a
        nt = self.opt.get("nt", "nt")
        a("L_start:")
        self.stamp(0)
        a("s_cmp_ge_u32 s2, 256")
        a("s_cbranch_scc1 L_end")
        a("s_load_dwordx16 s[4:19], s[0:1], 0")
        a("s_load_dwordx8 s[20:27], s[0:1], 64")
        a("v_lshrrev_b32 v1, 6, v0")
        a("v_and_b32 v0, 63, v0")
        a(f"v_readfirstlane_b32 s{S_WAVE}, v1")
        if self.stamps:
            for i in range(1, NSTAMP):
                a(f"s_mov_b64 s[{S_STAMP+2*i}:{S_STAMP+2*i+1}], 0")
            a(f"s_mov_b32 s{S_SPIN}, 0")
            a(f"s_mov_b32 s{S_FAST}, 0")
        a(f"s_and_b32 s{S_H}, s2, 7")
        a(f"s_lshr_b32 s{S_C}, s2, 3")
        a(f"s_cmp_ge_u32 s{S_WAVE}, 2")
        a("s_cbranch_scc1 L_att")
        self.helper_issue(nt)
        self.attention(nt)
        self.helper_main(nt)
        a("L_exit:")
        if self.stamps:
            self.dump_stamps()
        a("L_end:")
        a("s_endpgm")
        a("L_code_end:")
        lines = hazard.fix(a.lines, verbose=True)
        lab = NAME + "_kernel"
        hdr = open("cdna_kernels/" + NAME + ".s.ref").read().split("; Override launch")[0]
        txt = hdr + header([f"@launch grid=(256,1,1) block=(640,1,1) lds={LDS_SIZE}"])
        txt += kernel_begin(lab) + "\n".join(lines) + "\n" + RODATA
        txt += descriptor(lab, self.opt.get("vgpr", 128), 96 if self.stamps else 64)
        return txt

    def ws_setup(self):
        a = self.a
        a(f"s_load_dword s{S_E}, s[{S_WS}:{S_WS+1}], 0")
        self.srd(R_WS, S_WS, None, WS_SIZE)
        a(f"s_mov_b32 s{S_MASK}, {0xFFFFFFFF ^ TAG10}")
        a(f"s_mov_b32 s{S_CE}, {f2u(1.4426950408889634 / 16.0)}")

    def get_tag(self, vT):
        a = self.a
        a("s_waitcnt lgkmcnt(0)")
        a(f"s_add_u32 s{S_E}, s{S_E}, 1")
        a(f"s_and_b32 s{S_T}, s{S_E}, {TAG10}")
        a(f"s_and_b32 s{S_T8}, s{S_E}, {TAG8}")
        a(f"v_mov_b32 v{vT}, s{S_T}")

    vXS, vXL, vW = 4, 8, 16
    hM, hT, hOFF, hPUB = 72, 76, 77, 78
    hU = 80
    hA = 96
    hD = 104
    hS1, hS2, ht0, ht1 = 108, 109, 110, 111
    hXF = 112
    S_STRIDE, S_KQ, S_OFF, S_PUB, S_SO, S_P0 = 52, 53, 54, 55, 56, 57

    def w_loads(self, nt):
        a = self.a
        vW, vOFF = self.vW, self.hOFF
        for i in range(14):
            a(f"buffer_load_dwordx4 v[{vW+4*i}:{vW+4*i+3}], v{vOFF}, s[{R_B}:{R_B+3}], s{self.S_SO} offen {nt}")
            if i < 13:
                a(f"s_add_u32 s{self.S_SO}, s{self.S_SO}, s{self.S_STRIDE}")

    def helper_issue(self, nt):
        a = self.a
        vXS, vXL, vW, vOFF = self.vXS, self.vXL, self.vW, self.hOFF
        S_STRIDE, S_KQ, S_OFF, S_PUB, S_SO = self.S_STRIDE, self.S_KQ, self.S_OFF, self.S_PUB, self.S_SO
        a("s_setprio 3")
        lh1, lj = self.lab("h1"), self.lab("hj")
        a(f"s_cmp_eq_u32 s{S_WAVE}, 1")
        a(f"s_cbranch_scc1 {lh1}")
        a(f"s_and_b32 s{S_KQ}, s{S_C}, 3")
        a(f"s_lshr_b32 s58, s{S_C}, 2")
        a(f"s_mov_b32 s{S_STRIDE}, 8192")
        a(f"s_lshl_b32 s{S_OFF}, s{S_H}, 10")
        a(f"s_lshl_b32 s59, s58, 7")
        a(f"s_add_u32 s{S_OFF}, s{S_OFF}, s59")
        a(f"s_mul_i32 s59, s{S_KQ}, {112*8192}")
        a(f"s_add_u32 s{S_OFF}, s{S_OFF}, s59")
        a(f"s_mul_i32 s{S_PUB}, s{S_H}, {QP_H}")
        a(f"s_lshl_b32 s59, s{S_KQ}, 11")
        a(f"s_add_u32 s{S_PUB}, s{S_PUB}, s59")
        a(f"s_lshl_b32 s59, s58, 8")
        a(f"s_add_u32 s{S_PUB}, s{S_PUB}, s59")
        a(f"s_add_u32 s{S_PUB}, s{S_PUB}, {WS_QP + QP_COPY}")
        a(f"{lj}:")
        a(f"v_lshlrev_b32 v2, 4, v0")
        a(f"v_lshrrev_b32 v1, 3, v0")
        a(f"v_mul_u32_u24 v3, 28, v1")
        a(f"s_mul_i32 s59, s{S_STRIDE}, 14")
        a(f"v_mul_lo_u32 v{vOFF}, v1, s59")
        a(f"v_and_b32 v1, 7, v0")
        a(f"v_lshl_add_u32 v{vOFF}, v1, 4, v{vOFF}")
        a(f"s_mul_i32 s58, s{S_STRIDE}, 111")
        a(f"s_add_u32 s{R_B+2}, s58, 128")
        a(f"s_mov_b32 s{R_B+3}, 0x20000")
        a(f"s_mul_i32 s59, s{S_KQ}, 224")
        a(f"s_mov_b32 s{S_SO}, 0")
        a("s_waitcnt lgkmcnt(0)")
        self.stamp(1)
        self.srd(R_A, S_X, None, 896)
        a(f"buffer_load_dwordx4 v[{vXS}:{vXS+3}], v2, s[{R_A}:{R_A+3}], 0 offen")
        a(f"buffer_load_dwordx4 v[{vXL}:{vXL+3}], v3, s[{R_A}:{R_A+3}], s59 offen")
        a(f"buffer_load_dwordx3 v[{vXL+4}:{vXL+6}], v3, s[{R_A}:{R_A+3}], s59 offen offset:16")
        a(f"s_cmp_eq_u32 s{S_WAVE}, 1")
        a(f"s_cbranch_scc1 L_h1b")
        a(f"s_add_u32 s{R_B}, s{S_WQ}, s{S_OFF}")
        a(f"s_addc_u32 s{R_B+1}, s{S_WQ+1}, 0")
        self.w_loads(nt)
        a("s_barrier")
        a("s_branch L_hmain")
        a(f"{lh1}:")
        lpc = self.lab("pc")
        a(f"s_getpc_b64 s[{R_C}:{R_C+1}]")
        a(f"{lpc}:")
        a(f"s_mov_b32 s{R_C+2}, L_code_end-{lpc}")
        a(f"s_mov_b32 s{R_C+3}, 0x20000")
        a(f"v_lshlrev_b32 v2, 7, v0")
        a(f"buffer_load_dword v120, v2, s[{R_C}:{R_C+3}], 0 offen")
        a(f"s_and_b32 s{S_KQ}, s2, 3")
        a(f"s_lshr_b32 s58, s2, 2")
        a(f"s_mov_b32 s{S_STRIDE}, 3584")
        a(f"s_mul_i32 s{S_PUB}, s{S_KQ}, {1792*4}")
        a(f"s_add_u32 s{S_PUB}, s{S_PUB}, {WS_GP}")
        a("s_cmp_ge_u32 s58, 28")
        a(f"s_cselect_b32 s59, 28, 0")
        a(f"s_cselect_b32 s{S_OFF}, {4*1792*4}, 0")
        a(f"s_add_u32 s{S_PUB}, s{S_PUB}, s{S_OFF}")
        a(f"s_sub_u32 s58, s58, s59")
        a(f"s_lshl_b32 s59, s58, 8")
        a(f"s_add_u32 s{S_PUB}, s{S_PUB}, s59")
        a(f"s_lshl_b32 s{S_OFF}, s58, 7")
        a(f"s_mul_i32 s59, s{S_KQ}, {112*3584}")
        a(f"s_add_u32 s{S_OFF}, s{S_OFF}, s59")
        a(f"s_branch {lj}")
        a("L_h1b:")
        a("s_barrier")
        a("s_cmp_ge_u32 s2, 224")
        if self.stamps:
            a("s_cbranch_scc1 L_h1x")
        else:
            a("s_cbranch_scc1 L_end")
        a("s_cmp_ge_u32 s2, 112")
        a(f"s_cselect_b32 s{R_B}, s{S_WU}, s{S_WG}")
        a(f"s_cselect_b32 s{R_B+1}, s{S_WU+1}, s{S_WG+1}")
        a(f"s_add_u32 s{R_B}, s{R_B}, s{S_OFF}")
        a(f"s_addc_u32 s{R_B+1}, s{R_B+1}, 0")
        a("s_waitcnt vmcnt(0)")
        a("s_branch L_hmain")
        if self.stamps:
            a("L_h1x:")
            self.leave(3)

    def helper_main(self, nt):
        a = self.a
        vXS, vXL, vW = self.vXS, self.vXL, self.vW
        vM, vT, vOFF, vPUB = self.hM, self.hT, self.hOFF, self.hPUB
        vU, vA, vD = self.hU, self.hA, self.hD
        vS1, vS2, vt0, vt1, vXF = self.hS1, self.hS2, self.ht0, self.ht1, self.hXF
        S_OFF, S_PUB, S_SO, S_P0 = self.S_OFF, self.S_PUB, self.S_SO, self.S_P0
        a("L_hmain:")
        self.ws_setup()
        self.stamp(2)
        self.masks(vM, vt0, vt1)
        a(f"v_lshrrev_b32 v2, 4, v0")
        a(f"v_lshlrev_b32 v2, 4, v2")
        a(f"v_lshl_add_u32 v{vPUB}, v1, 5, v2")
        a("s_waitcnt vmcnt(16)")
        self.stamp(3)
        for j in range(4):
            a(f"v_lshlrev_b32 v{vU+2*j}, 16, v{vXS+j}")
            a(f"v_and_b32 v{vU+2*j+1}, 0xffff0000, v{vXS+j}")
        a(f"v_readfirstlane_b32 s{S_P0}, v{vU}")
        a(f"v_cmp_gt_u32 vcc, 56, v0")
        for j in range(8):
            a(f"v_subrev_f32 v{vU+j}, s{S_P0}, v{vU+j}")
        a(f"v_add_f32 v{vS1}, v{vU}, v{vU+1}")
        a(f"v_mul_f32 v{vS2}, v{vU}, v{vU}")
        for j in range(1, 8):
            if j > 1:
                a(f"v_add_f32 v{vS1}, v{vS1}, v{vU+j}")
            a(f"v_fmac_f32 v{vS2}, v{vU+j}, v{vU+j}")
        a(f"v_cndmask_b32 v{vS1}, 0, v{vS1}, vcc")
        a(f"v_cndmask_b32 v{vS2}, 0, v{vS2}, vcc")
        for ctl in ("quad_perm:[1,0,3,2]", "quad_perm:[2,3,0,1]", "row_half_mirror", "row_mirror"):
            a(f"v_add_f32_dpp v{vS1}, v{vS1}, v{vS1} {ctl} {DPP}")
            a(f"v_add_f32_dpp v{vS2}, v{vS2}, v{vS2} {ctl} {DPP}")
        self.xrow("v_add_f32", [vS1, vS2], [vt0, vt1])
        a(f"v_mul_f32 v{vS1}, {hex(f2u(1.0/448.0))}, v{vS1}")
        a(f"v_mul_f32 v{vS2}, {hex(f2u(1.0/448.0))}, v{vS2}")
        a(f"v_fma_f32 v{vS2}, -v{vS1}, v{vS1}, v{vS2}")
        a(f"v_add_f32 v{vS1}, s{S_P0}, v{vS1}")
        a(f"v_max_f32 v{vS2}, 0, v{vS2}")
        a(f"v_cvt_pk_bf16_f32 v{vt0}, v{vS1}, v{vS2}")
        a(f"v_lshlrev_b32 v{vS1}, 16, v{vt0}")
        a(f"v_and_b32 v{vS2}, 0xffff0000, v{vt0}")
        a(f"v_add_f32 v{vS2}, {hex(f2u(1e-5))}, v{vS2}")
        self.rnd_bf16(vS2)
        a(f"v_sqrt_f32 v{vS2}, v{vS2}")
        self.rnd_bf16(vS2)
        a(f"v_rcp_f32 v{vS2}, v{vS2}")
        lw = self.lab("hw")
        a(f"s_cmp_eq_u32 s{S_WAVE}, 0")
        a(f"s_cbranch_scc1 {lw}")
        self.w_loads(nt)
        a(f"{lw}:")
        a("s_waitcnt vmcnt(14)")
        for j in range(7):
            a(f"v_lshlrev_b32 v{vU+2*j}, 16, v{vXL+j}")
            a(f"v_and_b32 v{vU+2*j+1}, 0xffff0000, v{vXL+j}")
        for j in range(14):
            a(f"v_sub_f32 v{vU+j}, v{vU+j}, v{vS1}")
        for j in range(7):
            a(f"v_cvt_pk_bf16_f32 v{vXL+j}, v{vU+2*j}, v{vU+2*j+1}")
        for j in range(7):
            a(f"v_lshlrev_b32 v{vU+2*j}, 16, v{vXL+j}")
            a(f"v_and_b32 v{vU+2*j+1}, 0xffff0000, v{vXL+j}")
        for j in range(14):
            a(f"v_mul_f32 v{vU+j}, v{vU+j}, v{vS2}")
        for j in range(14):
            a(f"v_cvt_pk_bf16_f32 v{vU+j}, v{vU+j}, v{vU+j}")
        self.stamp(4)
        self.get_tag(vT)
        a(f"s_getreg_b32 s{S_XCC}, hwreg(HW_REG_XCC_ID)")
        a(f"s_lshl_b32 s{S_XCC}, s{S_XCC}, 8")
        a(f"s_or_b32 s58, s{S_XCC}, s{S_T8}")
        for j in range(4):
            a(f"v_mov_b32 v{vXS+j}, s58")
        a(f"s_mul_i32 s58, s{S_H}, {QP_H}")
        a(f"s_lshl_b32 s59, s{S_C}, 4")
        a(f"s_add_u32 s58, s58, s59")
        a(f"s_add_u32 s58, s58, {WS_QP + 8192}")
        a(f"v_mov_b32 v3, s58")
        for j in range(4):
            a(f"v_and_b32 v{vA+j}, v{vU}, v{vM+j}")
        for i in range(14):
            cur = vA + 4 * (i & 1)
            nxt = vA + 4 * ((i + 1) & 1)
            if i < 13:
                for j in range(4):
                    a(f"v_and_b32 v{nxt+j}, v{vU+i+1}, v{vM+j}")
            a(f"s_waitcnt vmcnt({13-i})")
            c = "0" if i == 0 else f"v[{vD}:{vD+3}]"
            a(f"v_mfma_f32_16x16x32_bf16 v[{vD}:{vD+3}], v[{cur}:{cur+3}], v[{vW+4*i}:{vW+4*i+3}], {c}")
        self.stamp(12)
        a(f"v_mov_b32 v{vt0}, s{S_T8}")
        a(f"s_mov_b32 s58, {0xFFFFFFFF ^ TAG8}")
        for j in range(4):
            a(f"v_mov_b32 v{vU+j}, v{vD+j}")
        for j in range(4):
            a(f"v_permlane32_swap_b32 v{vD+j}, v{vU+j}")
        for j in range(4):
            a(f"v_add_f32_dpp v{vD+j}, v{vU+j}, v{vD+j} row_ror:8 {DPP}")
        for j in range(4):
            a(f"v_add_u32 v{vD+j}, {(TAG8+1)//2}, v{vD+j}")
        for j in range(4):
            a(f"v_and_or_b32 v{vD+j}, v{vD+j}, s58, v{vt0}")
        lfin = self.lab("fin")
        a("s_mov_b64 exec, 0x00ff00ff")
        a(f"s_cmp_eq_u32 s{S_WAVE}, 1")
        a(f"s_cbranch_scc1 {lfin}")
        a(f"s_sub_u32 s57, s{S_PUB}, {QP_COPY}")
        a(f"buffer_store_dwordx4 v[{vD}:{vD+3}], v{vPUB}, s[{R_WS}:{R_WS+3}], s57 offen")
        if not self.opt.get("nocopyb"):
            a(f"buffer_store_dwordx4 v[{vD}:{vD+3}], v{vPUB}, s[{R_WS}:{R_WS+3}], s{S_PUB} offen sc1")
        a("s_mov_b64 exec, 1")
        a(f"s_mov_b32 s57, {QP_COPY}")
        a(f"buffer_store_dwordx4 v[{vXS}:{vXS+3}], v3, s[{R_WS}:{R_WS+3}], 0 offen")
        if not self.opt.get("nocopyb"):
            a(f"buffer_store_dwordx4 v[{vXS}:{vXS+3}], v3, s[{R_WS}:{R_WS+3}], s57 offen sc1")
        a("s_mov_b64 exec, -1")
        self.stamp(5)
        a(f"v_lshlrev_b32 v2, 4, v0")
        a(f"v_and_b32 v3, 0x1f0, v2")
        a(f"s_lshl_b32 s57, s{S_H}, 5")
        a(f"s_add_u32 s57, s57, s{S_C}")
        a(f"s_lshl_b32 s57, s57, 11")
        a(f"s_add_u32 s57, s57, {WS_OP}")
        a(f"s_lshl_b32 s56, s{S_H}, 10")
        a(f"s_lshr_b32 s59, s{S_C}, 4")
        a(f"s_lshl_b32 s59, s59, 9")
        a(f"s_add_u32 s56, s56, s59")
        a(f"s_add_u32 s56, s56, {WS_ML - 2048}")
        a(f"v_mov_b32 v{vt0}, s57")
        a(f"v_mov_b32 v{vt1}, s56")
        a(f"v_cmp_gt_u32 vcc, 16, v0")
        a(f"v_cndmask_b32 v{vt0}, v{vt1}, v{vt0}, vcc")
        a(f"v_lshl_add_u32 v{vt0}, v0, 7, v{vt0}")
        a("s_mov_b64 exec, 0xfffff")
        pt = self.opt.get("ptflag", "sc1")
        if self.opt.get("pretouch", 1):
            a(f"buffer_load_dword v{vU+8}, v{vt0}, s[{R_WS}:{R_WS+3}], 0 offen {pt}")
        a("s_mov_b64 exec, -1")
        a(f"s_mul_i32 s56, s{S_H}, {QP_H}")
        a(f"s_add_u32 s56, s56, {WS_QP}")
        if self.opt.get("qdelay"):
            a(f"s_sleep {self.opt['qdelay']}")

        def issue_q():
            a(f"s_and_b32 s58, s{S_SPIN}, {self.opt.get('qalt', 1)}")
            a(f"s_cmp_eq_u32 s58, {self.opt.get('qalt', 1)}")
            a(f"s_cselect_b32 s58, {QP_COPY}, 0")
            a(f"s_add_u32 s58, s58, s56")
            a(f"s_add_u32 s59, s58, 4096")
            a(f"s_add_u32 s57, s58, 8192")
            for kq in range(4):
                for hd in range(2):
                    r = vW + 4 * (kq * 2 + hd)
                    off = (kq & 1) * 2048 + hd * 1024
                    a(f"buffer_load_dwordx4 v[{r}:{r+3}], v2, s[{R_WS}:{R_WS+3}], s{58 + (kq >> 1)} offen offset:{off} sc1")
            a(f"buffer_load_dwordx4 v[{vW+32}:{vW+35}], v3, s[{R_WS}:{R_WS+3}], s57 offen sc1")
        self.poll("q", issue_q, [vW + 4 * i for i in range(9)], vS1, wide=False, st1=10)
        self.stamp(6)
        a(f"v_cmp_ne_u32 vcc, s{S_XCC}, v{vW+32}")
        for hd in range(2):
            for j in range(4):
                r = vW + 4 * hd + j
                a(f"v_add_f32 v{r}, v{r}, v{r+8}")
                a(f"v_add_f32 v{r+16}, v{r+16}, v{r+24}")
            for j in range(4):
                r = vW + 4 * hd + j
                a(f"v_add_f32 v{r}, v{r}, v{r+16}")
            r = vW + 4 * hd
            a(f"v_cvt_pk_bf16_f32 v{r}, v{r}, v{r+1}")
            a(f"v_cvt_pk_bf16_f32 v{r+1}, v{r+2}, v{r+3}")
        a(f"s_cmp_eq_u64 vcc, 0")
        a(f"s_cselect_b32 s{S_FAST}, 1, 0")
        a(f"v_mov_b32 v{vU}, s{S_FAST}")
        a(f"v_mov_b32 v3, 0")
        a(f"ds_write_b32 v3, v{vU} offset:{LDS_FAST}")
        a(f"v_lshlrev_b32 v2, 3, v0")
        a(f"ds_write_b64 v2, v[{vW}:{vW+1}] offset:{LDS_Q}")
        a(f"ds_write_b64 v2, v[{vW+4}:{vW+5}] offset:{LDS_Q+512}")
        a("s_waitcnt lgkmcnt(0)")
        a("s_barrier")
        self.stamp(7)
        self.leave(2)
        a(f"{lfin}:")
        a(f"buffer_store_dwordx4 v[{vD}:{vD+3}], v{vPUB}, s[{R_WS}:{R_WS+3}], s{S_PUB} offen sc1")
        a("s_mov_b64 exec, -1")
        self.stamp(5)
        a(f"v_lshlrev_b32 v2, 4, v0")
        vSa, vSb, vY, vZ = vW, vW + 4, vW + 8, vW + 12
        vCOL = vOFF
        a(f"s_mul_i32 s58, s{S_H}, 28")
        a(f"s_add_u32 s58, s58, s{S_C}")
        a(f"s_lshl_b32 s59, s58, 10")
        a(f"s_add_u32 s59, s59, {WS_Y1}")
        a(f"s_lshl_b32 s58, s58, 11")
        a(f"s_add_u32 s58, s58, {WS_S1}")
        a(f"s_lshl_b32 s{S_SO}, s{S_C}, 10")
        a(f"s_add_u32 s{S_SO}, s{S_SO}, {WS_L2}")
        a(f"s_lshl_b32 s{S_PUB}, s{S_H}, 7")
        a(f"s_add_u32 s{S_PUB}, s{S_PUB}, s{S_SO}")
        if self.opt.get("pretouch", 1):
            a(f"buffer_load_dwordx4 v[{vSa}:{vSa+3}], v2, s[{R_WS}:{R_WS+3}], s58 offen {pt}")
            a(f"buffer_load_dwordx4 v[{vSb}:{vSb+3}], v2, s[{R_WS}:{R_WS+3}], s58 offen offset:1024 {pt}")
            a(f"buffer_load_dwordx4 v[{vY}:{vY+3}], v2, s[{R_WS}:{R_WS+3}], s59 offen {pt}")
        a(f"v_and_b32 v1, 3, v0")
        a(f"v_lshrrev_b32 v3, 4, v0")
        a(f"v_lshl_add_u32 v1, v1, 2, v3")
        a(f"v_lshlrev_b32 v{vCOL}, 1, v1")
        a(f"s_lshl_b32 s{S_OFF}, s{S_C}, 5")
        a(f"buffer_load_ushort v{vXF}, v{vCOL}, s[{R_A}:{R_A+3}], s{S_OFF} offen")
        a(f"v_and_b32 v3, 4, v0")
        a(f"v_lshlrev_b32 v3, 4, v3")
        a(f"v_lshl_add_u32 v{vPUB}, v1, 2, v3")
        self.srd(R_C, S_OUT, None, 896)
        a("s_setprio 0")
        a("s_barrier")
        a("s_barrier")
        a("s_barrier")
        a("s_setprio 3")
        self.stamp(6)

        def issue_y():
            for j in range(4):
                a(f"v_mov_b32 v{vY+j}, v{vT}")
            a("s_mov_b32 exec_hi, 0x00ffffff")
            a(f"buffer_load_dwordx4 v[{vY}:{vY+3}], v2, s[{R_WS}:{R_WS+3}], s59 offen sc1")
            a("s_mov_b32 exec_hi, -1")
        a("s_waitcnt vmcnt(0)")
        self.poll("y", issue_y, [vY], vS1)
        self.stamp(7)

        def issue_s():
            a(f"buffer_load_dwordx4 v[{vSa}:{vSa+3}], v2, s[{R_WS}:{R_WS+3}], s58 offen sc1")
            a(f"buffer_load_dwordx4 v[{vSb}:{vSb+3}], v2, s[{R_WS}:{R_WS+3}], s58 offen offset:1024 sc1")
        issue_s()
        self.tr4(vY)
        for ctl in ("row_ror:8", "row_ror:4"):
            a(f"v_add_f32_dpp v{vY}, v{vY}, v{vY} {ctl} {DPP}")
        a(f"v_lshlrev_b32 v{vXF}, 16, v{vXF}")
        a(f"s_and_b32 s57, s{S_C}, 7")
        self.poll("s", issue_s, [vSa, vSb], vS1, first_issued=True)
        self.stamp(8)
        for j in range(4):
            a(f"v_add_f32 v{vSa+j}, v{vSa+j}, v{vSb+j}")
        self.tr4(vSa)
        a(f"v_add_f32_dpp v{vSa}, v{vSa}, v{vSa} row_ror:8 {DPP}")
        a(f"v_add_f32_dpp v{vY}, v{vSa}, v{vSa} row_ror:4 row_mask:0xf bank_mask:0x5")
        a(f"v_and_or_b32 v{vY}, v{vY}, s{S_MASK}, v{vT}")
        a("s_mov_b32 exec_lo, 0x00ff00ff")
        a("s_mov_b32 exec_hi, 0x00ff00ff")
        lown = self.lab("own")
        a(f"s_cmp_eq_u32 s57, s{S_H}")
        a(f"s_cbranch_scc1 {lown}")
        a(f"buffer_store_dword v{vY}, v{vPUB}, s[{R_WS}:{R_WS+3}], s{S_PUB} offen sc1")
        self.stamp(9)
        self.leave(0)
        a(f"{lown}:")
        a(f"buffer_store_dword v{vY}, v{vPUB}, s[{R_WS}:{R_WS+3}], s{S_PUB} offen")
        a("s_mov_b64 exec, -1")
        self.stamp(9)

        def issue_z():
            a(f"buffer_load_dwordx4 v[{vZ}:{vZ+3}], v2, s[{R_WS}:{R_WS+3}], s{S_SO} offen sc1")
        self.poll("z", issue_z, [vZ], vS1)
        self.stamp(10)
        self.tr4(vZ)
        a(f"v_add_f32_dpp v{vZ}, v{vZ}, v{vZ} row_ror:8 {DPP}")
        self.rnd_bf16(vZ)
        a(f"v_mul_f32 v{vZ+1}, {hex(f2u(-1.4426950408889634))}, v{vZ}")
        a(f"v_exp_f32 v{vZ+1}, v{vZ+1}")
        a(f"v_add_f32 v{vZ+1}, 1.0, v{vZ+1}")
        a(f"v_rcp_f32 v{vZ+1}, v{vZ+1}")
        a(f"v_mul_f32 v{vZ+1}, v{vZ}, v{vZ+1}")
        self.rnd_bf16(vZ + 1)
        a(f"v_mul_f32_dpp v{vZ}, v{vZ+1}, v{vZ} row_ror:12 {DPP}")
        self.rnd_bf16(vZ)
        a(f"v_add_f32 v{vZ}, v{vZ}, v{vXF}")
        a(f"v_cvt_pk_bf16_f32 v{vZ}, v{vZ}, v{vZ}")
        a("s_mov_b32 exec_lo, 0x000f000f")
        a("s_mov_b32 exec_hi, 0x000f000f")
        a(f"buffer_store_short v{vZ}, v{vCOL}, s[{R_C}:{R_C+3}], s{S_OFF} offen")
        self.stamp(11)
        a("s_cmp_lg_u32 s2, 0")
        a("s_cbranch_scc1 L_exit")
        a("s_mov_b64 exec, 1")
        a(f"v_mov_b32 v1, s{S_E}")
        a(f"v_mov_b32 v2, 0")
        a(f"buffer_store_dword v1, v2, s[{R_WS}:{R_WS+3}], 0 offen")

    def attention(self, nt):
        a = self.a
        vK, vV, vWS, vG = 4, 36, 68, 84
        vM, vT = 88, 92
        vKO, vVO, vWO, vGO = 93, 94, 95, 96
        vS = 97
        vQA = 99
        vQ = 100
        vD = 108
        vt0, vt1, vm, vl = 124, 125, 126, 127
        S_AW, S_OFF, S_4K, S_J = 52, 53, 54, 55
        a("L_att:")
        a(f"s_sub_u32 s{S_AW}, s{S_WAVE}, 2")
        a(f"s_lshl_b32 s{S_OFF}, s{S_H}, 25")
        a(f"s_lshl_b32 s59, s{S_C}, 16")
        a(f"s_add_u32 s{S_OFF}, s{S_OFF}, s59")
        a(f"s_lshl_b32 s59, s{S_AW}, 13")
        a(f"s_add_u32 s{S_OFF}, s{S_OFF}, s59")
        a(f"s_add_u32 s{S_OFF}, s{S_OFF}, {30 << 20}")
        a(f"s_mov_b32 s{S_4K}, 4096")
        a(f"v_lshrrev_b32 v1, 4, v0")
        a(f"v_bfe_u32 v2, v0, 2, 2")
        a(f"v_and_b32 v3, 3, v0")
        a(f"v_lshlrev_b32 v{vKO}, 9, v2")
        a(f"v_lshl_add_u32 v{vKO}, v1, 6, v{vKO}")
        a(f"v_lshl_add_u32 v{vKO}, v3, 4, v{vKO}")
        a(f"v_and_b32 v2, 15, v0")
        a(f"v_lshlrev_b32 v{vVO}, 9, v1")
        a(f"v_lshl_add_u32 v{vVO}, v2, 4, v{vVO}")
        self.masks(vM, vt0, vt1)
        a(f"v_bfe_u32 v3, v0, 3, 1")
        a(f"v_lshlrev_b32 v3, 9, v3")
        a(f"v_lshl_add_u32 v3, v1, 6, v3")
        a(f"v_and_b32 v{vt0}, 3, v0")
        a(f"v_lshl_add_u32 v{vQA}, v{vt0}, 4, v3")
        a("s_waitcnt lgkmcnt(0)")
        self.stamp(1)
        self.srd(R_A, S_K, S_OFF, 8192)
        self.ws_setup()
        self.srd(R_B, S_V, S_OFF, 8192)
        if self.opt.get("qtouch", 1):
            lq = self.lab("qt")
            a(f"s_cmp_lg_u32 s{S_AW}, 7")
            a(f"s_cbranch_scc1 {lq}")
            a(f"s_mul_i32 s58, s{S_H}, {QP_H}")
            a(f"s_add_u32 s58, s58, {WS_QP}")
            a(f"v_lshlrev_b32 v3, 7, v0")
            a(f"buffer_load_dword v{vG}, v3, s[{R_WS}:{R_WS+3}], s58 offen {self.opt.get('ptflag', 'sc1')}")
            a(f"{lq}:")
        a("s_barrier")
        D = self.opt.get("depth", 3)
        NPRE = self.opt.get("npre", 4)
        NL = 21
        S_W = 56
        st = {"n": 0}

        def load():
            n = st["n"]
            if n >= NL:
                return
            st["n"] += 1
            if n < 16:
                i, hf = (n & 7) >> 1, n & 1
                so = "0" if i < 2 else f"s{S_4K}"
                if n < 8:
                    r, vo, rs = vK + 8 * i + 4 * hf, vKO, R_A
                else:
                    r, vo, rs = vV + 8 * i + 4 * hf, vVO, R_B
                a(f"buffer_load_dwordx4 v[{r}:{r+3}], v{vo}, s[{rs}:{rs+3}], {so} offen offset:{(i&1)*2048+hf*256} {nt}")
            elif n < 20:
                i = n - 16
                a(f"buffer_load_dwordx4 v[{vWS+4*i}:{vWS+4*i+3}], v{vWO}, s[{R_C}:{R_C+3}], s{S_W+i} offen {nt}")
            else:
                a(f"buffer_load_dwordx4 v[{vG}:{vG+3}], v{vGO}, s[{R_WS}:{R_WS+3}], s{S_J} offen sc1")
        for n in range(8 + NPRE):
            if n >= D:
                a(f"s_waitcnt vmcnt({D-1})")
            load()
            if n == D - 1:
                lwd, lwj = self.lab("wd"), self.lab("wj")
                a(f"v_and_b32 v3, 7, v0")
                a(f"v_mul_u32_u24 v{vGO}, {1792*4}, v3")
                a(f"v_lshl_add_u32 v{vGO}, v1, 4, v{vGO}")
                a(f"s_and_b32 s{S_W}, s{S_AW}, 3")
                a(f"s_lshl_b32 s{S_W}, s{S_W}, 8")
                a(f"s_mov_b32 s{R_C+3}, 0x20000")
                a(f"s_cmp_ge_u32 s{S_AW}, 4")
                a(f"s_cbranch_scc1 {lwd}")
                a(f"s_lshl_b32 s{S_J}, s{S_H}, 5")
                a(f"s_add_u32 s{S_J}, s{S_J}, s{S_C}")
                a(f"s_mul_i32 s{S_J}, s{S_J}, {16*896}")
                a(f"s_add_u32 s{R_C}, s{S_WO}, s{S_J}")
                a(f"s_addc_u32 s{R_C+1}, s{S_WO+1}, 0")
                a(f"s_mov_b32 s{R_C+2}, {16*896}")
                a(f"v_mul_u32_u24 v{vWO}, 896, v1")
                a(f"s_movk_i32 s{S_OFF}, {4*896}")
                a(f"s_mov_b32 s{S_J}, {WS_SIZE}")
                a(f"s_branch {lwj}")
                a(f"{lwd}:")
                a(f"s_max_u32 s{S_OFF}, s{S_C}, {FFN0}")
                a(f"s_sub_u32 s{S_OFF}, s{S_OFF}, {FFN0}")
                a(f"s_mul_i32 s{S_J}, s{S_H}, 14")
                a(f"s_add_u32 s{S_J}, s{S_J}, s{S_OFF}")
                a(f"s_mul_i32 s{S_OFF}, s{S_J}, {16*896}")
                a(f"s_add_u32 s{R_C}, s{S_WD}, s{S_OFF}")
                a(f"s_addc_u32 s{R_C+1}, s{S_WD+1}, 0")
                a(f"s_lshl_b32 s{S_J}, s{S_J}, 6")
                a(f"s_add_u32 s{S_J}, s{S_J}, {WS_GP}")
                a(f"s_cmp_ge_u32 s{S_C}, {FFN0}")
                a(f"s_cselect_b32 s{R_C+2}, {16*896}, 0")
                a(f"s_cselect_b32 s{S_J}, s{S_J}, {WS_SIZE}")
                a(f"v_mul_u32_u24 v{vWO}, {4*896}, v1")
                a(f"s_movk_i32 s{S_OFF}, 896")
                a(f"{lwj}:")
                a(f"v_lshl_add_u32 v{vWO}, v2, 4, v{vWO}")
                for i in range(1, 4):
                    a(f"s_add_u32 s{S_W+i}, s{S_W+i-1}, s{S_OFF}")
            if n == 7:
                self.stamp(2)
        self.get_tag(vT)
        self.stamp(3)
        a("s_barrier")
        self.stamp(5)
        a(f"ds_read_b128 v[{vQ}:{vQ+3}], v{vQA} offset:{LDS_Q}")
        a(f"ds_read_b128 v[{vQ+4}:{vQ+7}], v{vQA} offset:{LDS_Q+256}")
        a(f"v_mov_b32 v{vt0}, 0")
        a(f"ds_read_b32 v{vt0}, v{vt0} offset:{LDS_FAST}")
        load()
        a(f"s_waitcnt vmcnt({st['n']-8}) lgkmcnt(0)")
        self.stamp(6)
        a(f"v_readfirstlane_b32 s{S_FAST}, v{vt0}")
        for hf in range(2):
            for i in range(4):
                d = vD + 4 * i
                k = vK + 8 * i + 4 * hf
                c = "0" if hf == 0 else f"v[{d}:{d+3}]"
                a(f"v_mfma_f32_16x16x32_bf16 v[{d}:{d+3}], v[{k}:{k+3}], v[{vQ+4*hf}:{vQ+4*hf+3}], {c}")
        vSc = vQ
        a(f"v_and_b32 v{vS}, 15, v0")
        a(f"v_lshlrev_b32 v{vS}, 3, v{vS}")
        a(f"v_and_b32 v{vS+1}, 8, v0")
        a(f"v_lshlrev_b32 v{vS+1}, 3, v{vS+1}")
        a(f"s_lshl_b32 s{S_OFF}, s{S_AW}, 3")
        a(f"v_add_u32 v{vS+1}, s{S_OFF}, v{vS+1}")
        for b in range(4):
            for i in range(4):
                d = vD + 4 * i + b
                if b == 0:
                    a(f"v_mov_b32_dpp v{vSc+i}, v{d} quad_perm:[0,0,0,0] {DPP}")
                else:
                    a(f"v_add_f32_dpp v{vSc+i}, v{d}, v{vSc+i} quad_perm:[{b},{b},{b},{b}] {DPP}")
        a(f"v_cvt_pk_bf16_f32 v{vt0}, v{vSc}, v{vSc+1}")
        a(f"v_cvt_pk_bf16_f32 v{vt1}, v{vSc+2}, v{vSc+3}")
        a(f"v_lshlrev_b32 v{vSc}, 16, v{vt0}")
        a(f"v_and_b32 v{vSc+1}, 0xffff0000, v{vt0}")
        a(f"v_lshlrev_b32 v{vSc+2}, 16, v{vt1}")
        a(f"v_and_b32 v{vSc+3}, 0xffff0000, v{vt1}")
        a(f"v_max3_f32 v{vm}, v{vSc}, v{vSc+1}, v{vSc+2}")
        a(f"v_max_f32 v{vm}, v{vm}, v{vSc+3}")
        self.xrow("v_max_f32", [vm], [vt0])
        for i in range(4):
            a(f"v_sub_f32 v{vSc+i}, v{vSc+i}, v{vm}")
        for i in range(4):
            a(f"v_mul_f32 v{vSc+i}, s{S_CE}, v{vSc+i}")
        for i in range(4):
            a(f"v_exp_f32 v{vSc+i}, v{vSc+i}")
        a(f"v_add_f32 v{vl}, v{vSc}, v{vSc+1}")
        a(f"v_add_f32 v{vt0}, v{vSc+2}, v{vSc+3}")
        a(f"v_add_f32 v{vl}, v{vl}, v{vt0}")
        self.xrow("v_add_f32", [vl], [vt0])
        a("s_mov_b64 exec, 0x101")
        a(f"ds_write_b64 v{vS+1}, v[{vm}:{vl}] offset:{LDS_ML}")
        a("s_mov_b64 exec, -1")
        load()
        a("s_waitcnt lgkmcnt(0)")
        a("s_barrier")
        self.stamp(7)
        vX = vD
        vMX = vD + 4
        a(f"ds_read_b64 v[{vX}:{vX+1}], v{vS} offset:{LDS_ML}")
        load()
        a("s_waitcnt lgkmcnt(0)")
        a(f"v_max_f32_dpp v{vMX}, v{vX}, v{vX} quad_perm:[1,0,3,2] {DPP}")
        a(f"v_max_f32_dpp v{vMX}, v{vMX}, v{vMX} quad_perm:[2,3,0,1] {DPP}")
        a(f"v_max_f32_dpp v{vMX}, v{vMX}, v{vMX} row_half_mirror {DPP}")
        a(f"v_sub_f32 v{vt0}, v{vm}, v{vMX}")
        a(f"v_sub_f32 v{vt1}, v{vX}, v{vMX}")
        a(f"v_mul_f32 v{vt0}, s{S_CE}, v{vt0}")
        a(f"v_mul_f32 v{vt1}, s{S_CE}, v{vt1}")
        a(f"v_exp_f32 v{vt0}, v{vt0}")
        a(f"v_exp_f32 v{vt1}, v{vt1}")
        for i in range(4):
            a(f"v_mul_f32 v{vSc+i}, v{vSc+i}, v{vt0}")
        for i in range(4):
            a(f"v_cvt_pk_bf16_f32 v{vSc+i}, v{vSc+i}, v{vSc+i}")
        vA = vK
        for i in range(4):
            for j in range(4):
                a(f"v_and_b32 v{vA+4*i+j}, v{vSc+i}, v{vM+j}")
        a(f"v_mul_f32 v{vMX+1}, v{vX+1}, v{vt1}")
        for ctl in ("quad_perm:[1,0,3,2]", "quad_perm:[2,3,0,1]", "row_half_mirror"):
            a(f"v_add_f32_dpp v{vMX+1}, v{vMX+1}, v{vMX+1} {ctl} {DPP}")
        a(f"v_and_or_b32 v{vMX}, v{vMX}, s{S_MASK}, v{vT}")
        a(f"v_and_or_b32 v{vMX+1}, v{vMX+1}, s{S_MASK}, v{vT}")
        a(f"v_mov_b32 v{vMX+2}, v{vMX}")
        a(f"v_mov_b32 v{vMX+3}, v{vMX+1}")
        self.stamp(4)
        vO = vD + 8
        a(f"v_lshrrev_b32 v{vS}, 5, v0")
        a(f"v_lshlrev_b32 v{vS}, 10, v{vS}")
        a(f"v_lshl_add_u32 v{vS}, v2, 5, v{vS}")
        a(f"v_and_b32 v{vS+1}, 16, v0")
        a(f"s_lshl_b32 s{S_OFF}, s{S_AW}, 11")
        a(f"v_add3_u32 v{vS}, v{vS}, v{vS+1}, s{S_OFF}")
        for i in range(4):
            for hf in range(2):
                n = 8 + 2 * i + hf
                while st["n"] <= n:
                    load()
                a(f"s_waitcnt vmcnt({st['n'] - n - 1})")
                while st["n"] - n - 1 < D and st["n"] < NL and n < 15:
                    load()
                if st["n"] >= 16 + self.opt.get("wburst", 0):
                    while st["n"] < NL:
                        load()
                o = vO + 4 * hf
                v = vV + 8 * i + 4 * hf
                c = "0" if i == 0 else f"v[{o}:{o+3}]"
                a(f"v_mfma_f32_16x16x32_bf16 v[{o}:{o+3}], v[{vA+4*i}:{vA+4*i+3}], v[{v}:{v+3}], {c}")
        while st["n"] < NL:
            load()
        self.stamp(8)
        a(f"ds_write_b128 v{vS}, v[{vO}:{vO+3}] offset:{LDS_O}")
        a(f"ds_write_b128 v{vS}, v[{vO+4}:{vO+7}] offset:{LDS_O+512}")
        a("s_waitcnt lgkmcnt(0)")
        a("s_barrier")
        self.stamp(9)
        lffn, lg, lml = self.lab("ffn"), self.lab("og"), self.lab("ml")
        a(f"s_cmp_ge_u32 s{S_AW}, 2")
        a(f"s_cbranch_scc1 {lml}")
        a(f"s_lshl_b32 s58, s{S_AW}, 10")
        a(f"v_lshl_add_u32 v3, v0, 4, s58")
        for w in range(8):
            a(f"ds_read_b128 v[{vV+4*w}:{vV+4*w+3}], v3 offset:{LDS_O + w*2048}")
        a(f"v_lshrrev_b32 v{vS}, 2, v0")
        a(f"v_lshlrev_b32 v{vS}, 11, v{vS}")
        a(f"v_and_b32 v{vS+1}, 3, v0")
        a(f"v_lshl_add_u32 v{vS}, v{vS+1}, 4, v{vS}")
        a(f"s_lshl_b32 s58, s{S_H}, 16")
        a(f"s_lshl_b32 s59, s{S_AW}, 15")
        a(f"s_add_u32 s58, s58, s59")
        a(f"s_lshl_b32 s59, s{S_C}, 6")
        a(f"s_add_u32 s58, s58, s59")
        a(f"s_add_u32 s58, s58, {WS_OP}")
        for w in range(0, 8, 2):
            a(f"s_waitcnt lgkmcnt({6-w})")
            for j in range(0, 4, 2):
                r = vV + 4 * w + j
                a(f"v_pk_add_f32 v[{r}:{r+1}], v[{r}:{r+1}], v[{r+4}:{r+5}]")
            if w in (2, 6):
                for j in range(0, 4, 2):
                    r = vV + 4 * (w - 2) + j
                    a(f"v_pk_add_f32 v[{r}:{r+1}], v[{r}:{r+1}], v[{r+8}:{r+9}]")
        for j in range(0, 4, 2):
            r = vV + j
            a(f"v_pk_add_f32 v[{r}:{r+1}], v[{r}:{r+1}], v[{r+16}:{r+17}]")
        self.tag4(vV, vT)
        self.pub(f"buffer_store_dwordx4 v[{vV}:{vV+3}], v{vS}, s[{R_WS}:{R_WS+3}], s58 offen")
        self.stamp(10)
        a(f"{lg}:")
        vOa, vOb, vMa, vMb = vK, vK + 4, vK + 8, vK + 12
        a(f"v_lshlrev_b32 v3, 4, v0")
        a(f"v_lshrrev_b32 v{vS}, 2, v0")
        a(f"v_lshlrev_b32 v{vS}, 4, v{vS}")
        a(f"s_lshl_b32 s58, s{S_H}, 16")
        a(f"s_lshl_b32 s59, s{S_C}, 11")
        a(f"s_add_u32 s58, s58, s59")
        a(f"s_add_u32 s58, s58, {WS_OP}")
        a(f"s_lshl_b32 s57, s{S_H}, 10")
        a(f"s_lshr_b32 s59, s{S_C}, 4")
        a(f"s_lshl_b32 s59, s59, 9")
        a(f"s_add_u32 s57, s57, s59")
        a(f"s_add_u32 s57, s57, {WS_ML}")

        def issue_o():
            a(f"buffer_load_dwordx4 v[{vMa}:{vMa+3}], v{vS}, s[{R_WS}:{R_WS+3}], s57 offen sc1")
            a(f"buffer_load_dwordx4 v[{vMb}:{vMb+3}], v{vS}, s[{R_WS}:{R_WS+3}], s57 offen offset:256 sc1")
            a(f"buffer_load_dwordx4 v[{vOa}:{vOa+3}], v3, s[{R_WS}:{R_WS+3}], s58 offen sc1")
            a(f"buffer_load_dwordx4 v[{vOb}:{vOb+3}], v3, s[{R_WS}:{R_WS+3}], s58 offen offset:1024 sc1")
        self.poll("o", issue_o, [vMa, vMb, vOa, vOb], vm)
        self.stamp(11)
        a(f"v_max_f32 v{vm}, v{vMa}, v{vMb}")
        a(f"v_max_f32_dpp v{vm}, v{vm}, v{vm} row_ror:4 {DPP}")
        a(f"v_max_f32_dpp v{vm}, v{vm}, v{vm} row_ror:8 {DPP}")
        self.xrow("v_max_f32", [vm], [vt0])
        a(f"v_sub_f32 v{vMa}, v{vMa}, v{vm}")
        a(f"v_sub_f32 v{vMb}, v{vMb}, v{vm}")
        a(f"v_mul_f32 v{vMa}, s{S_CE}, v{vMa}")
        a(f"v_mul_f32 v{vMb}, s{S_CE}, v{vMb}")
        a(f"v_exp_f32 v{vMa}, v{vMa}")
        a(f"v_exp_f32 v{vMb}, v{vMb}")
        a(f"v_mul_f32 v{vl}, v{vMa}, v{vMa+1}")
        for j in range(4):
            a(f"v_mul_f32 v{vOa+j}, v{vOa+j}, v{vMa}")
        a(f"v_fmac_f32 v{vl}, v{vMb}, v{vMb+1}")
        for j in range(4):
            a(f"v_fmac_f32 v{vOa+j}, v{vOb+j}, v{vMb}")
        a(f"v_add_f32_dpp v{vl}, v{vl}, v{vl} row_ror:4 {DPP}")
        self.tr4(vOa)
        a(f"v_add_f32_dpp v{vl}, v{vl}, v{vl} row_ror:8 {DPP}")
        a(f"v_add_f32_dpp v{vOa}, v{vOa}, v{vOa} row_ror:8 {DPP}")
        self.xrow("v_add_f32", [vl], [vt0])
        a(f"v_add_f32_dpp v{vOa}, v{vOa}, v{vOa} row_ror:4 {DPP}")
        a(f"v_rcp_f32 v{vl}, v{vl}")
        a(f"v_mul_f32 v{vOa}, v{vOa}, v{vl}")
        a(f"v_cvt_pk_bf16_f32 v{vOa}, v{vOa}, v{vOa}")
        vA2 = vV
        for i in range(4):
            for j in range(4):
                a(f"v_and_b32_dpp v{vA2+4*i+j}, v{vOa}, v{vM+j} quad_perm:[{i},{i},{i},{i}] {DPP}")
        a(f"s_mul_i32 s57, s{S_H}, {28*2048}")
        a(f"s_lshl_b32 s59, s{S_C}, 6")
        a(f"s_add_u32 s57, s57, s59")
        a(f"s_add_u32 s57, s57, {WS_S1}")
        a(f"s_mov_b32 s56, 11")
        lmv = self.lab("mv")
        a(f"{lmv}:")
        for i in range(4):
            c = "0" if i == 0 else f"v[{vD}:{vD+3}]"
            a(f"v_mfma_f32_16x16x32_bf16 v[{vD}:{vD+3}], v[{vA2+4*i}:{vA2+4*i+3}], v[{vWS+4*i}:{vWS+4*i+3}], {c}")
        a(f"s_and_b32 s58, s{S_AW}, 3")
        a(f"s_lshl_b32 s58, s58, 3")
        a(f"v_lshrrev_b32 v3, 1, v2")
        a(f"v_add_u32 v3, s58, v3")
        a(f"v_lshlrev_b32 v{vS}, s56, v3")
        a(f"v_and_b32 v3, 1, v0")
        a(f"v_lshl_add_u32 v{vS}, v3, 5, v{vS}")
        a(f"v_and_b32 v{vS+1}, 16, v0")
        a(f"v_add_u32 v{vS}, v{vS}, v{vS+1}")
        a(f"s_cmp_eq_u32 s58, 24")
        a(f"s_cselect_b32 exec_lo, 0x00ff00ff, -1")
        a(f"s_mov_b32 exec_hi, 0")
        self.tag4(vD, vT)
        self.pub(f"buffer_store_dwordx4 v[{vD}:{vD+3}], v{vS}, s[{R_WS}:{R_WS+3}], s57 offen")
        self.stamp(12)
        self.leave(0)
        a(f"{lml}:")
        a(f"s_cmp_ge_u32 s{S_AW}, 4")
        a(f"s_cbranch_scc1 {lffn}")
        a(f"s_cmp_lg_u32 s{S_AW}, 2")
        a(f"s_cbranch_scc1 {lg}")
        a(f"v_lshlrev_b32 v{vt0}, 6, v0")
        a(f"s_lshl_b32 s58, s{S_H}, 10")
        a(f"s_lshl_b32 s59, s{S_C}, 4")
        a(f"s_add_u32 s58, s58, s59")
        a(f"s_add_u32 s58, s58, {WS_ML}")
        a("s_mov_b64 exec, 0x101")
        self.pub(f"buffer_store_dwordx4 v[{vMX}:{vMX+3}], v{vt0}, s[{R_WS}:{R_WS+3}], s58 offen")
        a("s_mov_b64 exec, -1")
        a(f"s_branch {lg}")
        a(f"{lffn}:")
        a(f"s_cmp_lt_u32 s{S_C}, {FFN0}")
        a("s_cbranch_scc1 L_exit")

        def issue_g():
            a(f"buffer_load_dwordx4 v[{vG}:{vG+3}], v{vGO}, s[{R_WS}:{R_WS+3}], s{S_J} offen sc1")
        self.poll("g", issue_g, [vG], vm, first_issued=True, wide=False)
        self.stamp(11)
        for ctl in ("quad_perm:[1,0,3,2]", "quad_perm:[2,3,0,1]"):
            for j in range(4):
                a(f"v_add_f32_dpp v{vG+j}, v{vG+j}, v{vG+j} {ctl} {DPP}")
        a(f"v_and_b32 v{vt0}, 4, v0")
        a(f"v_cmp_eq_u32 vcc, 0, v{vt0}")
        a(f"v_mov_b32 v{vt1}, 0xff800000")
        a(f"v_cndmask_b32 v{vt0}, v{vt1}, 0, vcc")
        for j in range(4):
            self.rnd_bf16(vG + j)
        for j in range(4):
            a(f"v_max_f32 v{vG+j}, v{vG+j}, v{vt0}")
        for j in range(4):
            a(f"v_mul_f32_dpp v{vQ+j}, v{vG+j}, v{vG+j} row_half_mirror {DPP}")
        for j in range(4):
            a(f"v_cvt_pk_bf16_f32 v{vQ+j}, v{vQ+j}, v{vQ+j}")
        for i in range(4):
            for j in range(4):
                a(f"v_and_b32 v{vA2+4*i+j}, v{vQ+i}, v{vM+j}")
        a(f"s_mul_i32 s57, s{S_H}, {28*1024}")
        a(f"s_sub_u32 s59, s{S_C}, {FFN0}")
        a(f"s_lshl_b32 s59, s59, 6")
        a(f"s_add_u32 s57, s57, s59")
        a(f"s_add_u32 s57, s57, {WS_Y1}")
        a(f"s_mov_b32 s56, 10")
        a(f"s_branch {lmv}")

    def dump_stamps(self):
        a = self.a
        a("s_mov_b64 exec, -1")
        a(f"s_mov_b32 s{S_STAMP+2*14}, s{S_FAST}")
        a(f"s_mov_b32 s{S_STAMP+2*14+1}, 0")
        a(f"s_mov_b32 s{S_STAMP+2*15}, s{S_SPIN}")
        a(f"s_mov_b32 s{S_STAMP+2*15+1}, 0")
        self.stamp(13)
        a("s_waitcnt lgkmcnt(0)")
        a("s_sleep 100")
        a(f"s_add_u32 s40, s{S_WS}, {1 << 29}")
        a(f"s_addc_u32 s41, s{S_WS+1}, 0")
        a(f"s_mov_b32 s42, {256*10*NSTAMP*8}")
        a("s_mov_b32 s43, 0x20000")
        a(f"s_mul_i32 s44, s2, 10")
        a(f"s_add_u32 s44, s44, s{S_WAVE}")
        a(f"s_mul_i32 s44, s44, {NSTAMP*8}")
        a("v_mov_b32 v8, 0")
        a("s_mov_b64 exec, 1")
        for i in range(0, NSTAMP, 2):
            for q in range(4):
                a(f"v_mov_b32 v{10+q}, s{S_STAMP+2*i+q}")
            a(f"buffer_store_dwordx4 v[10:13], v8, s[40:43], s44 offen offset:{i*8}")
        a("s_waitcnt vmcnt(0)")


if __name__ == "__main__":
    out = "cdna_kernels/" + NAME + ".s"
    open(out, "w").write(Gen(False).build())
    open("k_st.s", "w").write(Gen(True).build())
    B = dict(npre=6, wburst=9)
    V = {
        "base": dict(B),
        "nopt": dict(B, pretouch=0, qtouch=0),
        "ptnt": dict(B, ptflag="nt"),
        "nob": dict(B, nocopyb=1, qalt=0xffff),
        "dl20": dict(B, qdelay=20),
        "dl32": dict(B, qdelay=32),
        "nob_dl20_ptnt": dict(B, nocopyb=1, qalt=0xffff, qdelay=20, ptflag="nt"),
        "d5": dict(B, depth=5),
    }
    for n, o in V.items():
        open(f"kv_{n}.s", "w").write(Gen(True, o).build())
```

```python
import re

TRANS = ("v_exp_f32", "v_log_f32", "v_rcp_f32", "v_rsq_f32", "v_sqrt_f32", "v_sin_f32", "v_cos_f32")

def regs_of(op):
    op = op.strip()
    neg = op.lstrip("-")
    m = re.fullmatch(r"abs\((.*)\)", neg)
    if m:
        neg = m.group(1)
    neg = neg.strip("|")
    m = re.fullmatch(r"([vs])(\d+)", neg)
    if m:
        return [(m.group(1), int(m.group(2)))]
    m = re.fullmatch(r"([vs])\[(\d+):(\d+)\]", neg)
    if m:
        return [(m.group(1), i) for i in range(int(m.group(2)), int(m.group(3)) + 1)]
    if neg in ("vcc", "vcc_lo", "vcc_hi"):
        return [("vcc", 0)]
    if neg in ("exec", "exec_lo", "exec_hi"):
        return [("exec", 0)]
    return []

def split_ops(rest):
    ops, depth, cur = [], 0, ""
    for ch in rest:
        if ch in "[(":
            depth += 1
        if ch in "])":
            depth -= 1
        if ch == "," and depth == 0:
            ops.append(cur.strip()); cur = ""
        else:
            cur += ch
    if cur.strip():
        ops.append(cur.strip())
    return ops

class Ins:
    def __init__(self, text):
        self.text = text
        t = text.split(";")[0].strip()
        self.label = t.endswith(":")
        self.directive = t.startswith(".") or not t
        self.mn = ""
        self.wr, self.rd = [], []
        self.kind = None
        self.dpp = False
        if self.label or self.directive:
            return
        parts = t.split(None, 1)
        self.mn = parts[0]
        rest = parts[1] if len(parts) > 1 else ""
        ops = split_ops(rest)
        clean = []
        for o in ops:
            clean.append(o.split()[0] if o.split() else o)
        mods = rest
        mn = self.mn
        self.ops = clean
        if mn.startswith("v_mfma"):
            self.kind = "mfma"
            self.wr = regs_of(clean[0])
            self.A = regs_of(clean[1]); self.B = regs_of(clean[2]); self.C = regs_of(clean[3])
            self.rd = self.A + self.B + self.C
        elif mn.startswith("v_"):
            self.kind = "valu"
            self.dpp = "_dpp" in mn or "quad_perm" in mods or "row_" in mods
            self.trans = any(mn.startswith(x) for x in TRANS)
            if "permlane" in mn and "swap" in mn:
                self.wr = regs_of(clean[0]) + regs_of(clean[1])
                self.rd = list(self.wr)
                self.perm = True
            else:
                self.wr = regs_of(clean[0])
                srcs = clean[1:]
                if mn.startswith(("v_add_co", "v_sub_co", "v_addc_co", "v_subb_co", "v_subrev_co")):
                    self.wr += regs_of(clean[1]); srcs = clean[2:]
                for o in srcs:
                    self.rd += regs_of(o)
                if mn.startswith(("v_fmac", "v_dot2c", "v_pk_fmac")) or self.dpp:
                    self.rd += regs_of(clean[0])
                if mn.startswith("v_cndmask") and len(clean) == 3:
                    self.rd += [("vcc", 0)]
        elif mn.startswith(("buffer_", "global_")):
            self.kind = "vmem"
            store = "store" in mn or "atomic" in mn
            if mn.startswith("buffer_"):
                if " lds" in mods:
                    for o in clean: self.rd += regs_of(o)
                elif store:
                    self.data = regs_of(clean[0])
                    for o in clean: self.rd += regs_of(o)
                else:
                    self.wr = regs_of(clean[0])
                    for o in clean[1:]: self.rd += regs_of(o)
            else:
                if store:
                    self.data = regs_of(clean[1])
                    for o in clean: self.rd += regs_of(o)
                else:
                    self.wr = regs_of(clean[0])
                    for o in clean[1:]: self.rd += regs_of(o)
            self.wide = store and ("x3" in mn or "x4" in mn)
        elif mn.startswith("ds_"):
            self.kind = "ds"
            if mn.startswith(("ds_read", "ds_bpermute", "ds_permute", "ds_swizzle")):
                self.wr = regs_of(clean[0])
                for o in clean[1:]: self.rd += regs_of(o)
            else:
                for o in clean: self.rd += regs_of(o)
        elif mn.startswith("s_"):
            self.kind = "salu"
        else:
            raise ValueError("unknown instr " + text)

    def states(self):
        if self.label or self.directive:
            return 0
        if self.mn == "s_nop":
            return int(self.ops[0], 0) + 1
        return 1

def need(prev, cur):
    n = 0
    pw, cr, cw = set(prev.wr), set(cur.rd), set(cur.wr)
    if prev.kind == "valu":
        vw = {r for r in pw if r[0] == "v"}
        sw = {r for r in pw if r[0] in ("s", "vcc")}
        if cur.kind == "valu":
            if vw & cr:
                if cur.dpp: n = max(n, 2)
                if getattr(cur, "perm", False): n = max(n, 2)
                if cur.mn.startswith(("v_readlane", "v_readfirstlane")): n = max(n, 1)
                if getattr(prev, "trans", False) and not getattr(cur, "trans", False): n = max(n, 1)
            if sw & cr:
                n = max(n, 4 if cur.mn.startswith(("v_readlane", "v_writelane")) else 2)
        if cur.kind == "mfma" and vw & cr:
            n = max(n, 2)
        if cur.kind == "vmem" and sw & cr:
            n = max(n, 5)
        if ("exec", 0) in pw:
            raise ValueError("VALU exec write unsupported")
    if prev.kind == "mfma":
        assert "16x16x32" in prev.mn
        if cur.kind == "mfma":
            if pw & (set(cur.A) | set(cur.B)): n = max(n, 8)
            if pw & set(cur.C) and list(prev.wr) != list(cur.C): n = max(n, 6)
            if pw & cw and list(prev.wr) != list(cur.C): n = max(n, 8)
        elif cur.kind in ("valu", "vmem", "ds"):
            if pw & (cr | cw): n = max(n, 8)
        if cur.kind == "valu" and set(prev.C) & cw:
            n = max(n, 3)
    if prev.kind == "vmem" and getattr(prev, "wide", False):
        if cur.kind in ("valu", "mfma") and set(prev.data) & cw: n = max(n, 2)
        elif set(prev.data) & cw: n = max(n, 1)
    return n

def fix(lines, verbose=False):
    out = []
    hist = []
    total = 0
    for l in lines:
        ins = Ins(l)
        if ins.label or ins.directive:
            out.append(l)
            continue
        dist = 0
        req = 0
        for p in reversed(hist):
            if dist >= 12:
                break
            r = need(p, ins) - dist
            req = max(req, r)
            dist += p.states()
        if req > 0:
            nop = Ins(f"    s_nop {req-1}")
            out.append(nop.text + "    ; hazard")
            hist.append(nop)
            total += req
        out.append(l)
        hist.append(ins)
    if verbose:
        print("inserted wait states:", total)
    return out
```

```python
import sys, importlib
sys.path.insert(0, "code")
import gen
for arg in sys.argv[1:]:
    n, d = arg.split("=", 1)
    o = eval("dict(" + d + ")")
    open(f"h_{n}.s", "w").write(gen.Gen(False, o).build())
    open(f"kv_{n}.s", "w").write(gen.Gen(True, o).build())
```

```python
import struct
import sys

sys.path.insert(0, "code")
from asmlib import *
import hazard

DPP = "row_mask:0xf bank_mask:0xf"


def f2u(x):
    return struct.unpack("<I", struct.pack("<f", x))[0]


WS_QP = 0x1C0000
QP_H = 0x2400
QP_COPY = 0x12000
WS_GP = 0x20000
WS_ML = 0x30000
WS_L2 = 0x38000
WS_OP = 0x40000
WS_S1 = 0x100000
WS_Y1 = 0x180000
WS_SIZE = 0x200000
TAG10 = 0x3FF
TAG8 = 0xFF

LDS_Q = 0
LDS_ML = 1024
LDS_FAST = 1280
LDS_O = 2048
LDS_SIZE = 2048 + 16384

SPIN_MAX = 1 << 16
FFN0 = 18

S_X, S_K, S_V, S_WQ, S_WO, S_WG, S_WU, S_WD, S_OUT, S_DBG, S_WS = 4, 6, 8, 10, 12, 16, 18, 20, 22, 24, 26
S_H, S_C, S_WAVE, S_T, S_E, S_T8 = 28, 29, 30, 31, 32, 33
S_CNT = 34
R_WS, R_A, R_B, R_C = 36, 40, 44, 48
S_MASK, S_CE, S_SPIN, S_FAST = 60, 61, 62, 63
S_XCC = 14
S_STAMP = 64
NSTAMP = 16


class Gen:
    def __init__(self, stamps=False, opt=None):
        self.a = Asm()
        self.stamps = stamps
        self.opt = opt or {}
        self.nlab = 0

    def lab(self, base):
        self.nlab += 1
        return f"L_{base}_{self.nlab}"

    def stamp(self, i):
        if self.stamps:
            self.a(f"s_memrealtime s[{S_STAMP+2*i}:{S_STAMP+2*i+1}]")

    def srd(self, r, base, off_sgpr, nbytes):
        a = self.a
        if off_sgpr is None:
            a(f"s_mov_b32 s{r}, s{base}")
            a(f"s_mov_b32 s{r+1}, s{base+1}")
        else:
            a(f"s_add_u32 s{r}, s{base}, s{off_sgpr}")
            a(f"s_addc_u32 s{r+1}, s{base+1}, 0")
        a(f"s_mov_b32 s{r+2}, {nbytes}")
        a(f"s_mov_b32 s{r+3}, 0x20000")

    def masks(self, vm, t0, t1):
        a = self.a
        a(f"v_and_b32 v{t0}, 1, v0")
        a(f"v_lshlrev_b32 v{t0}, 4, v{t0}")
        a(f"v_mov_b32 v{t1}, 0xffff")
        a(f"v_lshlrev_b32 v{t0}, v{t0}, v{t1}")
        a(f"v_bfe_u32 v{t1}, v0, 1, 2")
        for j in range(4):
            a(f"v_cmp_eq_u32 vcc, {j}, v{t1}")
            a(f"v_cndmask_b32 v{vm+j}, 0, v{t0}, vcc")

    def tagcheck(self, grans, vacc, retry, wide):
        a = self.a
        st, mk = (S_T, TAG10) if wide else (S_T8, TAG8)
        first = True
        for g in grans:
            for j in range(4):
                a(f"v_xor_b32 v{g+j}, s{st}, v{g+j}")
            if first:
                a(f"v_or3_b32 v{vacc}, v{g}, v{g+1}, v{g+2}")
                a(f"v_or_b32 v{vacc}, v{vacc}, v{g+3}")
                first = False
            else:
                a(f"v_or3_b32 v{vacc}, v{vacc}, v{g}, v{g+1}")
                a(f"v_or3_b32 v{vacc}, v{vacc}, v{g+2}, v{g+3}")
        a(f"v_and_b32 v{vacc}, {mk}, v{vacc}")
        a(f"v_cmp_ne_u32 vcc, 0, v{vacc}")
        a(f"s_cbranch_vccnz {retry}")

    def poll(self, name, issue, grans, vacc, first_issued=False, wide=True, st1=None):
        a = self.a
        top, retry, ok = self.lab(name + "_top"), self.lab(name + "_retry"), self.lab(name + "_ok")
        a(f"s_mov_b32 s{S_SPIN}, 0")
        if first_issued:
            chk = self.lab(name + "_chk")
            a(f"s_branch {chk}")
        else:
            a(f"s_branch {top}")
        a(f"{retry}:")
        a(f"s_add_u32 s{S_SPIN}, s{S_SPIN}, 1")
        a(f"s_cmp_ge_u32 s{S_SPIN}, {SPIN_MAX}")
        a(f"s_cbranch_scc1 {ok}")
        a(f"{top}:")
        issue()
        if first_issued:
            a(f"{chk}:")
        a("s_waitcnt vmcnt(0)")
        if self.stamps and st1 is not None:
            l = self.lab("st")
            a(f"s_cmp_lg_u32 s{S_SPIN}, 0")
            a(f"s_cbranch_scc1 {l}")
            self.stamp(st1)
            a(f"{l}:")
        self.tagcheck(grans, vacc, retry, wide)
        a(f"{ok}:")

    def tag4(self, r, vT):
        for j in range(4):
            self.a(f"v_and_or_b32 v{r+j}, v{r+j}, s{S_MASK}, v{vT}")

    def pub(self, ins):
        a = self.a
        if self.opt.get("nofast"):
            a(ins + " sc1")
            return
        l1, l2 = self.lab("pf"), self.lab("pj")
        a(f"s_cmp_eq_u32 s{S_FAST}, 1")
        a(f"s_cbranch_scc1 {l1}")
        a(ins + " sc1")
        a(f"s_branch {l2}")
        a(f"{l1}:")
        a(ins)
        a(f"{l2}:")

    def xrow(self, op, regs, tmps):
        a = self.a
        for sw in ("v_permlane16_swap_b32", "v_permlane32_swap_b32"):
            for r, t in zip(regs, tmps):
                a(f"v_mov_b32 v{t}, v{r}")
            for r, t in zip(regs, tmps):
                a(f"{sw} v{r}, v{t}")
            for r, t in zip(regs, tmps):
                a(f"{op} v{r}, v{r}, v{t}")

    def tr4(self, r):
        a = self.a
        a(f"v_permlane32_swap_b32 v{r}, v{r+2}")
        a(f"v_permlane32_swap_b32 v{r+1}, v{r+3}")
        a(f"v_add_f32 v{r}, v{r}, v{r+2}")
        a(f"v_add_f32 v{r+1}, v{r+1}, v{r+3}")
        a(f"v_permlane16_swap_b32 v{r}, v{r+1}")
        a(f"v_add_f32 v{r}, v{r}, v{r+1}")

    def rnd_bf16(self, r):
        self.a(f"v_cvt_pk_bf16_f32 v{r}, v{r}, v{r}")
        self.a(f"v_and_b32 v{r}, 0xffff0000, v{r}")

    def leave(self, nbar):
        if self.stamps:
            for _ in range(nbar):
                self.a("s_barrier")
            self.a("s_branch L_exit")
        else:
            self.a("s_endpgm")

    def build(self):
        a = self.a
        nt = self.opt.get("nt", "nt")
        a("L_start:")
        self.stamp(0)
        if self.opt.get("padto") or self.opt.get("dbgt"):
            a("s_memrealtime s[34:35]")
        a("s_cmp_ge_u32 s2, 256")
        a("s_cbranch_scc1 L_end")
        a("s_load_dwordx16 s[4:19], s[0:1], 0")
        a("s_load_dwordx8 s[20:27], s[0:1], 64")
        a("v_lshrrev_b32 v1, 6, v0")
        a("v_and_b32 v0, 63, v0")
        a(f"v_readfirstlane_b32 s{S_WAVE}, v1")
        if self.stamps:
            for i in range(1, NSTAMP):
                a(f"s_mov_b64 s[{S_STAMP+2*i}:{S_STAMP+2*i+1}], 0")
            a(f"s_mov_b32 s{S_SPIN}, 0")
            a(f"s_mov_b32 s{S_FAST}, 0")
        a(f"s_and_b32 s{S_H}, s2, 7")
        a(f"s_lshr_b32 s{S_C}, s2, 3")
        a(f"s_cmp_ge_u32 s{S_WAVE}, 2")
        a("s_cbranch_scc1 L_att")
        self.helper_issue(nt)
        self.attention(nt)
        self.helper_main(nt)
        a("L_exit:")
        if self.stamps:
            self.dump_stamps()
        a("L_end:")
        a("s_endpgm")
        a("L_code_end:")
        lines = hazard.fix(a.lines, verbose=True)
        lab = NAME + "_kernel"
        hdr = open("cdna_kernels/" + NAME + ".s.ref").read().split("; Override launch")[0]
        txt = hdr + header([f"@launch grid=(256,1,1) block=(640,1,1) lds={self.opt.get('lds', LDS_SIZE)}"])
        txt += kernel_begin(lab) + "\n".join(lines) + "\n" + RODATA
        txt += descriptor(lab, self.opt.get("vgpr", 128), 96 if self.stamps else self.opt.get("sgpr", 64))
        return txt

    def ws_setup(self):
        a = self.a
        a(f"s_load_dword s{S_E}, s[{S_WS}:{S_WS+1}], 0")
        self.srd(R_WS, S_WS, None, WS_SIZE)
        a(f"s_mov_b32 s{S_MASK}, {0xFFFFFFFF ^ TAG10}")
        a(f"s_mov_b32 s{S_CE}, {f2u(1.4426950408889634 / 16.0)}")

    def get_tag(self, vT):
        a = self.a
        a("s_waitcnt lgkmcnt(0)")
        a(f"s_add_u32 s{S_E}, s{S_E}, 1")
        a(f"s_and_b32 s{S_T}, s{S_E}, {TAG10}")
        a(f"s_and_b32 s{S_T8}, s{S_E}, {TAG8}")
        a(f"v_mov_b32 v{vT}, s{S_T}")

    vXS, vXL, vW = 4, 8, 16
    hM, hT, hOFF, hPUB = 72, 76, 77, 78
    hU = 80
    hA = 96
    hD = 104
    hS1, hS2, ht0, ht1 = 108, 109, 110, 111
    hXF = 112
    S_STRIDE, S_KQ, S_OFF, S_PUB, S_SO, S_P0 = 52, 53, 54, 55, 56, 57

    def w_loads(self, nt):
        a = self.a
        vW, vOFF = self.vW, self.hOFF
        for i in range(14):
            a(f"buffer_load_dwordx4 v[{vW+4*i}:{vW+4*i+3}], v{vOFF}, s[{R_B}:{R_B+3}], s{self.S_SO} offen {nt}")
            if i < 13:
                a(f"s_add_u32 s{self.S_SO}, s{self.S_SO}, s{self.S_STRIDE}")

    def helper_issue(self, nt):
        a = self.a
        vXS, vXL, vW, vOFF = self.vXS, self.vXL, self.vW, self.hOFF
        S_STRIDE, S_KQ, S_OFF, S_PUB, S_SO = self.S_STRIDE, self.S_KQ, self.S_OFF, self.S_PUB, self.S_SO
        a("s_setprio 3")
        lh1, lj = self.lab("h1"), self.lab("hj")
        a(f"s_cmp_eq_u32 s{S_WAVE}, 1")
        a(f"s_cbranch_scc1 {lh1}")
        a(f"s_and_b32 s{S_KQ}, s{S_C}, 3")
        a(f"s_lshr_b32 s58, s{S_C}, 2")
        a(f"s_mov_b32 s{S_STRIDE}, 8192")
        a(f"s_lshl_b32 s{S_OFF}, s{S_H}, 10")
        a(f"s_lshl_b32 s59, s58, 7")
        a(f"s_add_u32 s{S_OFF}, s{S_OFF}, s59")
        a(f"s_mul_i32 s59, s{S_KQ}, {112*8192}")
        a(f"s_add_u32 s{S_OFF}, s{S_OFF}, s59")
        a(f"s_mul_i32 s{S_PUB}, s{S_H}, {QP_H}")
        a(f"s_lshl_b32 s59, s{S_KQ}, 11")
        a(f"s_add_u32 s{S_PUB}, s{S_PUB}, s59")
        a(f"s_lshl_b32 s59, s58, 8")
        a(f"s_add_u32 s{S_PUB}, s{S_PUB}, s59")
        a(f"s_add_u32 s{S_PUB}, s{S_PUB}, {WS_QP + QP_COPY}")
        a(f"{lj}:")
        a(f"v_lshlrev_b32 v2, 4, v0")
        a(f"v_lshrrev_b32 v1, 3, v0")
        a(f"v_mul_u32_u24 v3, 28, v1")
        a(f"s_mul_i32 s59, s{S_STRIDE}, 14")
        a(f"v_mul_lo_u32 v{vOFF}, v1, s59")
        a(f"v_and_b32 v1, 7, v0")
        a(f"v_lshl_add_u32 v{vOFF}, v1, 4, v{vOFF}")
        a(f"s_mul_i32 s58, s{S_STRIDE}, 111")
        a(f"s_add_u32 s{R_B+2}, s58, 128")
        a(f"s_mov_b32 s{R_B+3}, 0x20000")
        a(f"s_mul_i32 s59, s{S_KQ}, 224")
        a(f"s_mov_b32 s{S_SO}, 0")
        a("s_waitcnt lgkmcnt(0)")
        self.stamp(1)
        self.srd(R_A, S_X, None, 896)
        a(f"buffer_load_dwordx4 v[{vXS}:{vXS+3}], v2, s[{R_A}:{R_A+3}], 0 offen")
        a(f"buffer_load_dwordx4 v[{vXL}:{vXL+3}], v3, s[{R_A}:{R_A+3}], s59 offen")
        a(f"buffer_load_dwordx3 v[{vXL+4}:{vXL+6}], v3, s[{R_A}:{R_A+3}], s59 offen offset:16")
        a(f"s_cmp_eq_u32 s{S_WAVE}, 1")
        a(f"s_cbranch_scc1 L_h1b")
        a(f"s_add_u32 s{R_B}, s{S_WQ}, s{S_OFF}")
        a(f"s_addc_u32 s{R_B+1}, s{S_WQ+1}, 0")
        self.w_loads(nt)
        a("s_barrier")
        a("s_branch L_hmain")
        a(f"{lh1}:")
        lpc = self.lab("pc")
        a(f"s_getpc_b64 s[{R_C}:{R_C+1}]")
        a(f"{lpc}:")
        a(f"s_mov_b32 s{R_C+2}, L_code_end-{lpc}")
        a(f"s_mov_b32 s{R_C+3}, 0x20000")
        a(f"v_lshlrev_b32 v2, 7, v0")
        a(f"buffer_load_dword v120, v2, s[{R_C}:{R_C+3}], 0 offen")
        a(f"s_and_b32 s{S_KQ}, s2, 3")
        a(f"s_lshr_b32 s58, s2, 2")
        a(f"s_mov_b32 s{S_STRIDE}, 3584")
        a(f"s_mul_i32 s{S_PUB}, s{S_KQ}, {1792*4}")
        a(f"s_add_u32 s{S_PUB}, s{S_PUB}, {WS_GP}")
        a("s_cmp_ge_u32 s58, 28")
        a(f"s_cselect_b32 s59, 28, 0")
        a(f"s_cselect_b32 s{S_OFF}, {4*1792*4}, 0")
        a(f"s_add_u32 s{S_PUB}, s{S_PUB}, s{S_OFF}")
        a(f"s_sub_u32 s58, s58, s59")
        a(f"s_lshl_b32 s59, s58, 8")
        a(f"s_add_u32 s{S_PUB}, s{S_PUB}, s59")
        a(f"s_lshl_b32 s{S_OFF}, s58, 7")
        a(f"s_mul_i32 s59, s{S_KQ}, {112*3584}")
        a(f"s_add_u32 s{S_OFF}, s{S_OFF}, s59")
        a(f"s_branch {lj}")
        a("L_h1b:")
        a("s_barrier")
        a("s_cmp_ge_u32 s2, 224")
        if self.stamps:
            a("s_cbranch_scc1 L_h1x")
        else:
            a("s_cbranch_scc1 L_end")
        a("s_cmp_ge_u32 s2, 112")
        a(f"s_cselect_b32 s{R_B}, s{S_WU}, s{S_WG}")
        a(f"s_cselect_b32 s{R_B+1}, s{S_WU+1}, s{S_WG+1}")
        a(f"s_add_u32 s{R_B}, s{R_B}, s{S_OFF}")
        a(f"s_addc_u32 s{R_B+1}, s{R_B+1}, 0")
        a("s_waitcnt vmcnt(0)")
        a("s_branch L_hmain")
        if self.stamps:
            a("L_h1x:")
            self.leave(3)

    def helper_main(self, nt):
        a = self.a
        vXS, vXL, vW = self.vXS, self.vXL, self.vW
        vM, vT, vOFF, vPUB = self.hM, self.hT, self.hOFF, self.hPUB
        vU, vA, vD = self.hU, self.hA, self.hD
        vS1, vS2, vt0, vt1, vXF = self.hS1, self.hS2, self.ht0, self.ht1, self.hXF
        S_OFF, S_PUB, S_SO, S_P0 = self.S_OFF, self.S_PUB, self.S_SO, self.S_P0
        a("L_hmain:")
        self.ws_setup()
        self.stamp(2)
        self.masks(vM, vt0, vt1)
        a(f"v_lshrrev_b32 v2, 4, v0")
        a(f"v_lshlrev_b32 v2, 4, v2")
        a(f"v_lshl_add_u32 v{vPUB}, v1, 5, v2")
        a("s_waitcnt vmcnt(16)")
        self.stamp(3)
        for j in range(4):
            a(f"v_lshlrev_b32 v{vU+2*j}, 16, v{vXS+j}")
            a(f"v_and_b32 v{vU+2*j+1}, 0xffff0000, v{vXS+j}")
        a(f"v_readfirstlane_b32 s{S_P0}, v{vU}")
        a(f"v_cmp_gt_u32 vcc, 56, v0")
        for j in range(8):
            a(f"v_subrev_f32 v{vU+j}, s{S_P0}, v{vU+j}")
        a(f"v_add_f32 v{vS1}, v{vU}, v{vU+1}")
        a(f"v_mul_f32 v{vS2}, v{vU}, v{vU}")
        for j in range(1, 8):
            if j > 1:
                a(f"v_add_f32 v{vS1}, v{vS1}, v{vU+j}")
            a(f"v_fmac_f32 v{vS2}, v{vU+j}, v{vU+j}")
        a(f"v_cndmask_b32 v{vS1}, 0, v{vS1}, vcc")
        a(f"v_cndmask_b32 v{vS2}, 0, v{vS2}, vcc")
        for ctl in ("quad_perm:[1,0,3,2]", "quad_perm:[2,3,0,1]", "row_half_mirror", "row_mirror"):
            a(f"v_add_f32_dpp v{vS1}, v{vS1}, v{vS1} {ctl} {DPP}")
            a(f"v_add_f32_dpp v{vS2}, v{vS2}, v{vS2} {ctl} {DPP}")
        self.xrow("v_add_f32", [vS1, vS2], [vt0, vt1])
        a(f"v_mul_f32 v{vS1}, {hex(f2u(1.0/448.0))}, v{vS1}")
        a(f"v_mul_f32 v{vS2}, {hex(f2u(1.0/448.0))}, v{vS2}")
        a(f"v_fma_f32 v{vS2}, -v{vS1}, v{vS1}, v{vS2}")
        a(f"v_add_f32 v{vS1}, s{S_P0}, v{vS1}")
        a(f"v_max_f32 v{vS2}, 0, v{vS2}")
        a(f"v_cvt_pk_bf16_f32 v{vt0}, v{vS1}, v{vS2}")
        a(f"v_lshlrev_b32 v{vS1}, 16, v{vt0}")
        a(f"v_and_b32 v{vS2}, 0xffff0000, v{vt0}")
        a(f"v_add_f32 v{vS2}, {hex(f2u(1e-5))}, v{vS2}")
        self.rnd_bf16(vS2)
        a(f"v_sqrt_f32 v{vS2}, v{vS2}")
        self.rnd_bf16(vS2)
        a(f"v_rcp_f32 v{vS2}, v{vS2}")
        lw = self.lab("hw")
        a(f"s_cmp_eq_u32 s{S_WAVE}, 0")
        a(f"s_cbranch_scc1 {lw}")
        self.w_loads(nt)
        a(f"{lw}:")
        a("s_waitcnt vmcnt(14)")
        for j in range(7):
            a(f"v_lshlrev_b32 v{vU+2*j}, 16, v{vXL+j}")
            a(f"v_and_b32 v{vU+2*j+1}, 0xffff0000, v{vXL+j}")
        for j in range(14):
            a(f"v_sub_f32 v{vU+j}, v{vU+j}, v{vS1}")
        for j in range(7):
            a(f"v_cvt_pk_bf16_f32 v{vXL+j}, v{vU+2*j}, v{vU+2*j+1}")
        for j in range(7):
            a(f"v_lshlrev_b32 v{vU+2*j}, 16, v{vXL+j}")
            a(f"v_and_b32 v{vU+2*j+1}, 0xffff0000, v{vXL+j}")
        for j in range(14):
            a(f"v_mul_f32 v{vU+j}, v{vU+j}, v{vS2}")
        for j in range(14):
            a(f"v_cvt_pk_bf16_f32 v{vU+j}, v{vU+j}, v{vU+j}")
        self.stamp(4)
        self.get_tag(vT)
        a(f"s_getreg_b32 s{S_XCC}, hwreg(HW_REG_XCC_ID)")
        a(f"s_lshl_b32 s{S_XCC}, s{S_XCC}, 8")
        a(f"s_or_b32 s58, s{S_XCC}, s{S_T8}")
        for j in range(4):
            a(f"v_mov_b32 v{vXS+j}, s58")
        a(f"s_mul_i32 s58, s{S_H}, {QP_H}")
        a(f"s_lshl_b32 s59, s{S_C}, 4")
        a(f"s_add_u32 s58, s58, s59")
        a(f"s_add_u32 s58, s58, {WS_QP + 8192}")
        a(f"v_mov_b32 v3, s58")
        for j in range(4):
            a(f"v_and_b32 v{vA+j}, v{vU}, v{vM+j}")
        for i in range(14):
            cur = vA + 4 * (i & 1)
            nxt = vA + 4 * ((i + 1) & 1)
            if i < 13:
                for j in range(4):
                    a(f"v_and_b32 v{nxt+j}, v{vU+i+1}, v{vM+j}")
            a(f"s_waitcnt vmcnt({13-i})")
            c = "0" if i == 0 else f"v[{vD}:{vD+3}]"
            a(f"v_mfma_f32_16x16x32_bf16 v[{vD}:{vD+3}], v[{cur}:{cur+3}], v[{vW+4*i}:{vW+4*i+3}], {c}")
        self.stamp(12)
        a(f"v_mov_b32 v{vt0}, s{S_T8}")
        a(f"s_mov_b32 s58, {0xFFFFFFFF ^ TAG8}")
        for j in range(4):
            a(f"v_mov_b32 v{vU+j}, v{vD+j}")
        for j in range(4):
            a(f"v_permlane32_swap_b32 v{vD+j}, v{vU+j}")
        for j in range(4):
            a(f"v_add_f32_dpp v{vD+j}, v{vU+j}, v{vD+j} row_ror:8 {DPP}")
        for j in range(4):
            a(f"v_add_u32 v{vD+j}, {(TAG8+1)//2}, v{vD+j}")
        for j in range(4):
            a(f"v_and_or_b32 v{vD+j}, v{vD+j}, s58, v{vt0}")
        lfin = self.lab("fin")
        a("s_mov_b64 exec, 0x00ff00ff")
        a(f"s_cmp_eq_u32 s{S_WAVE}, 1")
        a(f"s_cbranch_scc1 {lfin}")
        a(f"s_sub_u32 s57, s{S_PUB}, {QP_COPY}")
        a(f"buffer_store_dwordx4 v[{vD}:{vD+3}], v{vPUB}, s[{R_WS}:{R_WS+3}], s57 offen")
        if not self.opt.get("nocopyb"):
            a(f"buffer_store_dwordx4 v[{vD}:{vD+3}], v{vPUB}, s[{R_WS}:{R_WS+3}], s{S_PUB} offen sc1")
        a("s_mov_b64 exec, 1")
        a(f"s_mov_b32 s57, {QP_COPY}")
        a(f"buffer_store_dwordx4 v[{vXS}:{vXS+3}], v3, s[{R_WS}:{R_WS+3}], 0 offen")
        if not self.opt.get("nocopyb"):
            a(f"buffer_store_dwordx4 v[{vXS}:{vXS+3}], v3, s[{R_WS}:{R_WS+3}], s57 offen sc1")
        a("s_mov_b64 exec, -1")
        self.stamp(5)
        a(f"v_lshlrev_b32 v2, 4, v0")
        a(f"v_and_b32 v3, 0x1f0, v2")
        a(f"s_lshl_b32 s57, s{S_H}, 5")
        a(f"s_add_u32 s57, s57, s{S_C}")
        a(f"s_lshl_b32 s57, s57, 11")
        a(f"s_add_u32 s57, s57, {WS_OP}")
        a(f"s_lshl_b32 s56, s{S_H}, 10")
        a(f"s_lshr_b32 s59, s{S_C}, 4")
        a(f"s_lshl_b32 s59, s59, 9")
        a(f"s_add_u32 s56, s56, s59")
        a(f"s_add_u32 s56, s56, {WS_ML - 2048}")
        a(f"v_mov_b32 v{vt0}, s57")
        a(f"v_mov_b32 v{vt1}, s56")
        a(f"v_cmp_gt_u32 vcc, 16, v0")
        a(f"v_cndmask_b32 v{vt0}, v{vt1}, v{vt0}, vcc")
        a(f"v_lshl_add_u32 v{vt0}, v0, 7, v{vt0}")
        a("s_mov_b64 exec, 0xfffff")
        pt = self.opt.get("ptflag", "sc1")
        if self.opt.get("pretouch", 1):
            a(f"buffer_load_dword v{vU+8}, v{vt0}, s[{R_WS}:{R_WS+3}], 0 offen {pt}")
        a("s_mov_b64 exec, -1")
        a(f"s_mul_i32 s56, s{S_H}, {QP_H}")
        a(f"s_add_u32 s56, s56, {WS_QP}")
        if self.opt.get("qdelay"):
            a(f"s_sleep {self.opt['qdelay']}")

        def issue_q():
            a(f"s_and_b32 s58, s{S_SPIN}, {self.opt.get('qalt', 1)}")
            a(f"s_cmp_eq_u32 s58, {self.opt.get('qalt', 1)}")
            a(f"s_cselect_b32 s58, {QP_COPY}, 0")
            a(f"s_add_u32 s58, s58, s56")
            a(f"s_add_u32 s59, s58, 4096")
            a(f"s_add_u32 s57, s58, 8192")
            for kq in range(4):
                for hd in range(2):
                    r = vW + 4 * (kq * 2 + hd)
                    off = (kq & 1) * 2048 + hd * 1024
                    a(f"buffer_load_dwordx4 v[{r}:{r+3}], v2, s[{R_WS}:{R_WS+3}], s{58 + (kq >> 1)} offen offset:{off} sc1")
            a(f"buffer_load_dwordx4 v[{vW+32}:{vW+35}], v3, s[{R_WS}:{R_WS+3}], s57 offen sc1")
        self.poll("q", issue_q, [vW + 4 * i for i in range(9)], vS1, wide=False, st1=10)
        self.stamp(6)
        a(f"v_cmp_ne_u32 vcc, s{S_XCC}, v{vW+32}")
        for hd in range(2):
            for j in range(4):
                r = vW + 4 * hd + j
                a(f"v_add_f32 v{r}, v{r}, v{r+8}")
                a(f"v_add_f32 v{r+16}, v{r+16}, v{r+24}")
            for j in range(4):
                r = vW + 4 * hd + j
                a(f"v_add_f32 v{r}, v{r}, v{r+16}")
            r = vW + 4 * hd
            a(f"v_cvt_pk_bf16_f32 v{r}, v{r}, v{r+1}")
            a(f"v_cvt_pk_bf16_f32 v{r+1}, v{r+2}, v{r+3}")
        a(f"s_cmp_eq_u64 vcc, 0")
        a(f"s_cselect_b32 s{S_FAST}, 1, 0")
        a(f"v_mov_b32 v{vU}, s{S_FAST}")
        a(f"v_mov_b32 v3, 0")
        a(f"ds_write_b32 v3, v{vU} offset:{LDS_FAST}")
        a(f"v_lshlrev_b32 v2, 3, v0")
        a(f"ds_write_b64 v2, v[{vW}:{vW+1}] offset:{LDS_Q}")
        a(f"ds_write_b64 v2, v[{vW+4}:{vW+5}] offset:{LDS_Q+512}")
        a("s_waitcnt lgkmcnt(0)")
        a("s_barrier")
        self.stamp(7)
        self.leave(2)
        a(f"{lfin}:")
        a(f"buffer_store_dwordx4 v[{vD}:{vD+3}], v{vPUB}, s[{R_WS}:{R_WS+3}], s{S_PUB} offen sc1")
        a("s_mov_b64 exec, -1")
        self.stamp(5)
        a(f"v_lshlrev_b32 v2, 4, v0")
        vSa, vSb, vY, vZ = vW, vW + 4, vW + 8, vW + 12
        vCOL = vOFF
        a(f"s_mul_i32 s58, s{S_H}, 28")
        a(f"s_add_u32 s58, s58, s{S_C}")
        a(f"s_lshl_b32 s59, s58, 10")
        a(f"s_add_u32 s59, s59, {WS_Y1}")
        a(f"s_lshl_b32 s58, s58, 11")
        a(f"s_add_u32 s58, s58, {WS_S1}")
        a(f"s_lshl_b32 s{S_SO}, s{S_C}, 10")
        a(f"s_add_u32 s{S_SO}, s{S_SO}, {WS_L2}")
        a(f"s_lshl_b32 s{S_PUB}, s{S_H}, 7")
        a(f"s_add_u32 s{S_PUB}, s{S_PUB}, s{S_SO}")
        if self.opt.get("pretouch", 1):
            a(f"buffer_load_dwordx4 v[{vSa}:{vSa+3}], v2, s[{R_WS}:{R_WS+3}], s58 offen {pt}")
            a(f"buffer_load_dwordx4 v[{vSb}:{vSb+3}], v2, s[{R_WS}:{R_WS+3}], s58 offen offset:1024 {pt}")
            a(f"buffer_load_dwordx4 v[{vY}:{vY+3}], v2, s[{R_WS}:{R_WS+3}], s59 offen {pt}")
        a(f"v_and_b32 v1, 3, v0")
        a(f"v_lshrrev_b32 v3, 4, v0")
        a(f"v_lshl_add_u32 v1, v1, 2, v3")
        a(f"v_lshlrev_b32 v{vCOL}, 1, v1")
        a(f"s_lshl_b32 s{S_OFF}, s{S_C}, 5")
        a(f"buffer_load_ushort v{vXF}, v{vCOL}, s[{R_A}:{R_A+3}], s{S_OFF} offen")
        a(f"v_and_b32 v3, 4, v0")
        a(f"v_lshlrev_b32 v3, 4, v3")
        a(f"v_lshl_add_u32 v{vPUB}, v1, 2, v3")
        self.srd(R_C, S_OUT, None, 896)
        a("s_setprio 0")
        a("s_barrier")
        a("s_barrier")
        a("s_barrier")
        a("s_setprio 3")
        self.stamp(6)

        def issue_y():
            for j in range(4):
                a(f"v_mov_b32 v{vY+j}, v{vT}")
            a("s_mov_b32 exec_hi, 0x00ffffff")
            a(f"buffer_load_dwordx4 v[{vY}:{vY+3}], v2, s[{R_WS}:{R_WS+3}], s59 offen sc1")
            a("s_mov_b32 exec_hi, -1")
        a("s_waitcnt vmcnt(0)")
        self.poll("y", issue_y, [vY], vS1)
        self.stamp(7)

        def issue_s():
            a(f"buffer_load_dwordx4 v[{vSa}:{vSa+3}], v2, s[{R_WS}:{R_WS+3}], s58 offen sc1")
            a(f"buffer_load_dwordx4 v[{vSb}:{vSb+3}], v2, s[{R_WS}:{R_WS+3}], s58 offen offset:1024 sc1")
        issue_s()
        self.tr4(vY)
        for ctl in ("row_ror:8", "row_ror:4"):
            a(f"v_add_f32_dpp v{vY}, v{vY}, v{vY} {ctl} {DPP}")
        a(f"v_lshlrev_b32 v{vXF}, 16, v{vXF}")
        a(f"s_and_b32 s57, s{S_C}, 7")
        self.poll("s", issue_s, [vSa, vSb], vS1, first_issued=True)
        self.stamp(8)
        for j in range(4):
            a(f"v_add_f32 v{vSa+j}, v{vSa+j}, v{vSb+j}")
        self.tr4(vSa)
        a(f"v_add_f32_dpp v{vSa}, v{vSa}, v{vSa} row_ror:8 {DPP}")
        a(f"v_add_f32_dpp v{vY}, v{vSa}, v{vSa} row_ror:4 row_mask:0xf bank_mask:0x5")
        a(f"v_and_or_b32 v{vY}, v{vY}, s{S_MASK}, v{vT}")
        a("s_mov_b32 exec_lo, 0x00ff00ff")
        a("s_mov_b32 exec_hi, 0x00ff00ff")
        lown = self.lab("own")
        a(f"s_cmp_eq_u32 s57, s{S_H}")
        a(f"s_cbranch_scc1 {lown}")
        a(f"buffer_store_dword v{vY}, v{vPUB}, s[{R_WS}:{R_WS+3}], s{S_PUB} offen sc1")
        self.stamp(9)
        self.leave(0)
        a(f"{lown}:")
        a(f"buffer_store_dword v{vY}, v{vPUB}, s[{R_WS}:{R_WS+3}], s{S_PUB} offen")
        a("s_mov_b64 exec, -1")
        self.stamp(9)

        def issue_z():
            a(f"buffer_load_dwordx4 v[{vZ}:{vZ+3}], v2, s[{R_WS}:{R_WS+3}], s{S_SO} offen sc1")
        self.poll("z", issue_z, [vZ], vS1)
        self.stamp(10)
        self.tr4(vZ)
        a(f"v_add_f32_dpp v{vZ}, v{vZ}, v{vZ} row_ror:8 {DPP}")
        self.rnd_bf16(vZ)
        a(f"v_mul_f32 v{vZ+1}, {hex(f2u(-1.4426950408889634))}, v{vZ}")
        a(f"v_exp_f32 v{vZ+1}, v{vZ+1}")
        a(f"v_add_f32 v{vZ+1}, 1.0, v{vZ+1}")
        a(f"v_rcp_f32 v{vZ+1}, v{vZ+1}")
        a(f"v_mul_f32 v{vZ+1}, v{vZ}, v{vZ+1}")
        self.rnd_bf16(vZ + 1)
        a(f"v_mul_f32_dpp v{vZ}, v{vZ+1}, v{vZ} row_ror:12 {DPP}")
        self.rnd_bf16(vZ)
        a(f"v_add_f32 v{vZ}, v{vZ}, v{vXF}")
        a(f"v_cvt_pk_bf16_f32 v{vZ}, v{vZ}, v{vZ}")
        a("s_mov_b32 exec_lo, 0x000f000f")
        a("s_mov_b32 exec_hi, 0x000f000f")
        a(f"buffer_store_short v{vZ}, v{vCOL}, s[{R_C}:{R_C+3}], s{S_OFF} offen")
        self.stamp(11)
        if self.opt.get("padto"):
            a("L_pad:")
            a("s_memrealtime s[58:59]")
            a("s_waitcnt lgkmcnt(0)")
            a("s_sub_u32 s58, s58, s34")
            a(f"s_cmp_lt_u32 s58, {self.opt['padto']}")
            a("s_cbranch_scc1 L_pad")
        if self.opt.get("dbgt"):
            a("s_memrealtime s[58:59]")
            a("s_waitcnt lgkmcnt(0)")
            a(f"s_cmp_ge_u32 s{S_C}, 8")
            a("s_cbranch_scc1 L_exit")
            a("s_mov_b64 exec, 1")
            a(f"s_lshl_b32 s57, s{S_H}, 2")
            a("v_mov_b32 v1, s57")
            a("v_mov_b32 v2, s34")
            a("v_mov_b32 v3, s58")
            a(f"global_store_dword v1, v2, s[{S_DBG}:{S_DBG+1}]")
            a(f"global_store_dword v1, v3, s[{S_DBG}:{S_DBG+1}] offset:32")
        a("s_cmp_lg_u32 s2, 0")
        a("s_cbranch_scc1 L_exit")
        a("s_mov_b64 exec, 1")
        a(f"v_mov_b32 v1, s{S_E}")
        a(f"v_mov_b32 v2, 0")
        a(f"buffer_store_dword v1, v2, s[{R_WS}:{R_WS+3}], 0 offen")

    def attention(self, nt):
        a = self.a
        vK, vV, vWS, vG = 4, 36, 68, 84
        vM, vT = 88, 92
        vKO, vVO, vWO, vGO = 93, 94, 95, 96
        vS = 97
        vQA = 99
        vQ = 100
        vD = 108
        vt0, vt1, vm, vl = 124, 125, 126, 127
        S_AW, S_OFF, S_4K, S_J = 52, 53, 54, 55
        a("L_att:")
        a(f"s_sub_u32 s{S_AW}, s{S_WAVE}, 2")
        a(f"s_lshl_b32 s{S_OFF}, s{S_H}, 25")
        a(f"s_lshl_b32 s59, s{S_C}, 16")
        a(f"s_add_u32 s{S_OFF}, s{S_OFF}, s59")
        a(f"s_lshl_b32 s59, s{S_AW}, 13")
        a(f"s_add_u32 s{S_OFF}, s{S_OFF}, s59")
        a(f"s_add_u32 s{S_OFF}, s{S_OFF}, {30 << 20}")
        a(f"s_mov_b32 s{S_4K}, 4096")
        a(f"v_lshrrev_b32 v1, 4, v0")
        a(f"v_bfe_u32 v2, v0, 2, 2")
        a(f"v_and_b32 v3, 3, v0")
        a(f"v_lshlrev_b32 v{vKO}, 9, v2")
        a(f"v_lshl_add_u32 v{vKO}, v1, 6, v{vKO}")
        a(f"v_lshl_add_u32 v{vKO}, v3, 4, v{vKO}")
        a(f"v_and_b32 v2, 15, v0")
        a(f"v_lshlrev_b32 v{vVO}, 9, v1")
        a(f"v_lshl_add_u32 v{vVO}, v2, 4, v{vVO}")
        self.masks(vM, vt0, vt1)
        a(f"v_bfe_u32 v3, v0, 3, 1")
        a(f"v_lshlrev_b32 v3, 9, v3")
        a(f"v_lshl_add_u32 v3, v1, 6, v3")
        a(f"v_and_b32 v{vt0}, 3, v0")
        a(f"v_lshl_add_u32 v{vQA}, v{vt0}, 4, v3")
        a("s_waitcnt lgkmcnt(0)")
        self.stamp(1)
        self.srd(R_A, S_K, S_OFF, 8192)
        self.ws_setup()
        self.srd(R_B, S_V, S_OFF, 8192)
        if self.opt.get("qtouch", 1):
            lq = self.lab("qt")
            a(f"s_cmp_lg_u32 s{S_AW}, 7")
            a(f"s_cbranch_scc1 {lq}")
            a(f"s_mul_i32 s58, s{S_H}, {QP_H}")
            a(f"s_add_u32 s58, s58, {WS_QP}")
            a(f"v_lshlrev_b32 v3, 7, v0")
            a(f"buffer_load_dword v{vG}, v3, s[{R_WS}:{R_WS+3}], s58 offen {self.opt.get('ptflag', 'sc1')}")
            a(f"{lq}:")
        a("s_barrier")
        D = self.opt.get("depth", 3)
        NPRE = self.opt.get("npre", 4)
        NL = 21
        S_W = 56
        st = {"n": 0}

        def load():
            n = st["n"]
            if n >= NL:
                return
            st["n"] += 1
            if n < 16:
                i, hf = (n & 7) >> 1, n & 1
                so = "0" if i < 2 else f"s{S_4K}"
                if n < 8:
                    r, vo, rs = vK + 8 * i + 4 * hf, vKO, R_A
                else:
                    r, vo, rs = vV + 8 * i + 4 * hf, vVO, R_B
                a(f"buffer_load_dwordx4 v[{r}:{r+3}], v{vo}, s[{rs}:{rs+3}], {so} offen offset:{(i&1)*2048+hf*256} {nt}")
            elif n < 20:
                i = n - 16
                a(f"buffer_load_dwordx4 v[{vWS+4*i}:{vWS+4*i+3}], v{vWO}, s[{R_C}:{R_C+3}], s{S_W+i} offen {nt}")
            else:
                a(f"buffer_load_dwordx4 v[{vG}:{vG+3}], v{vGO}, s[{R_WS}:{R_WS+3}], s{S_J} offen sc1")
        for n in range(8 + NPRE):
            if n >= D:
                a(f"s_waitcnt vmcnt({D-1})")
            load()
            if n == D - 1:
                lwd, lwj = self.lab("wd"), self.lab("wj")
                a(f"v_and_b32 v3, 7, v0")
                a(f"v_mul_u32_u24 v{vGO}, {1792*4}, v3")
                a(f"v_lshl_add_u32 v{vGO}, v1, 4, v{vGO}")
                a(f"s_and_b32 s{S_W}, s{S_AW}, 3")
                a(f"s_lshl_b32 s{S_W}, s{S_W}, 8")
                a(f"s_mov_b32 s{R_C+3}, 0x20000")
                a(f"s_cmp_ge_u32 s{S_AW}, 4")
                a(f"s_cbranch_scc1 {lwd}")
                a(f"s_lshl_b32 s{S_J}, s{S_H}, 5")
                a(f"s_add_u32 s{S_J}, s{S_J}, s{S_C}")
                a(f"s_mul_i32 s{S_J}, s{S_J}, {16*896}")
                a(f"s_add_u32 s{R_C}, s{S_WO}, s{S_J}")
                a(f"s_addc_u32 s{R_C+1}, s{S_WO+1}, 0")
                a(f"s_mov_b32 s{R_C+2}, {16*896}")
                a(f"v_mul_u32_u24 v{vWO}, 896, v1")
                a(f"s_movk_i32 s{S_OFF}, {4*896}")
                a(f"s_mov_b32 s{S_J}, {WS_SIZE}")
                a(f"s_branch {lwj}")
                a(f"{lwd}:")
                a(f"s_max_u32 s{S_OFF}, s{S_C}, {FFN0}")
                a(f"s_sub_u32 s{S_OFF}, s{S_OFF}, {FFN0}")
                a(f"s_mul_i32 s{S_J}, s{S_H}, 14")
                a(f"s_add_u32 s{S_J}, s{S_J}, s{S_OFF}")
                a(f"s_mul_i32 s{S_OFF}, s{S_J}, {16*896}")
                a(f"s_add_u32 s{R_C}, s{S_WD}, s{S_OFF}")
                a(f"s_addc_u32 s{R_C+1}, s{S_WD+1}, 0")
                a(f"s_lshl_b32 s{S_J}, s{S_J}, 6")
                a(f"s_add_u32 s{S_J}, s{S_J}, {WS_GP}")
                a(f"s_cmp_ge_u32 s{S_C}, {FFN0}")
                a(f"s_cselect_b32 s{R_C+2}, {16*896}, 0")
                a(f"s_cselect_b32 s{S_J}, s{S_J}, {WS_SIZE}")
                a(f"v_mul_u32_u24 v{vWO}, {4*896}, v1")
                a(f"s_movk_i32 s{S_OFF}, 896")
                a(f"{lwj}:")
                a(f"v_lshl_add_u32 v{vWO}, v2, 4, v{vWO}")
                for i in range(1, 4):
                    a(f"s_add_u32 s{S_W+i}, s{S_W+i-1}, s{S_OFF}")
            if n == 7:
                self.stamp(2)
        self.get_tag(vT)
        self.stamp(3)
        a("s_barrier")
        self.stamp(5)
        a(f"ds_read_b128 v[{vQ}:{vQ+3}], v{vQA} offset:{LDS_Q}")
        a(f"ds_read_b128 v[{vQ+4}:{vQ+7}], v{vQA} offset:{LDS_Q+256}")
        a(f"v_mov_b32 v{vt0}, 0")
        a(f"ds_read_b32 v{vt0}, v{vt0} offset:{LDS_FAST}")
        load()
        a(f"s_waitcnt vmcnt({st['n']-8}) lgkmcnt(0)")
        self.stamp(6)
        a(f"v_readfirstlane_b32 s{S_FAST}, v{vt0}")
        for hf in range(2):
            for i in range(4):
                d = vD + 4 * i
                k = vK + 8 * i + 4 * hf
                c = "0" if hf == 0 else f"v[{d}:{d+3}]"
                a(f"v_mfma_f32_16x16x32_bf16 v[{d}:{d+3}], v[{k}:{k+3}], v[{vQ+4*hf}:{vQ+4*hf+3}], {c}")
        vSc = vQ
        a(f"v_and_b32 v{vS}, 15, v0")
        a(f"v_lshlrev_b32 v{vS}, 3, v{vS}")
        a(f"v_and_b32 v{vS+1}, 8, v0")
        a(f"v_lshlrev_b32 v{vS+1}, 3, v{vS+1}")
        a(f"s_lshl_b32 s{S_OFF}, s{S_AW}, 3")
        a(f"v_add_u32 v{vS+1}, s{S_OFF}, v{vS+1}")
        for b in range(4):
            for i in range(4):
                d = vD + 4 * i + b
                if b == 0:
                    a(f"v_mov_b32_dpp v{vSc+i}, v{d} quad_perm:[0,0,0,0] {DPP}")
                else:
                    a(f"v_add_f32_dpp v{vSc+i}, v{d}, v{vSc+i} quad_perm:[{b},{b},{b},{b}] {DPP}")
        a(f"v_cvt_pk_bf16_f32 v{vt0}, v{vSc}, v{vSc+1}")
        a(f"v_cvt_pk_bf16_f32 v{vt1}, v{vSc+2}, v{vSc+3}")
        a(f"v_lshlrev_b32 v{vSc}, 16, v{vt0}")
        a(f"v_and_b32 v{vSc+1}, 0xffff0000, v{vt0}")
        a(f"v_lshlrev_b32 v{vSc+2}, 16, v{vt1}")
        a(f"v_and_b32 v{vSc+3}, 0xffff0000, v{vt1}")
        a(f"v_max3_f32 v{vm}, v{vSc}, v{vSc+1}, v{vSc+2}")
        a(f"v_max_f32 v{vm}, v{vm}, v{vSc+3}")
        self.xrow("v_max_f32", [vm], [vt0])
        for i in range(4):
            a(f"v_sub_f32 v{vSc+i}, v{vSc+i}, v{vm}")
        for i in range(4):
            a(f"v_mul_f32 v{vSc+i}, s{S_CE}, v{vSc+i}")
        for i in range(4):
            a(f"v_exp_f32 v{vSc+i}, v{vSc+i}")
        a(f"v_add_f32 v{vl}, v{vSc}, v{vSc+1}")
        a(f"v_add_f32 v{vt0}, v{vSc+2}, v{vSc+3}")
        a(f"v_add_f32 v{vl}, v{vl}, v{vt0}")
        self.xrow("v_add_f32", [vl], [vt0])
        a("s_mov_b64 exec, 0x101")
        a(f"ds_write_b64 v{vS+1}, v[{vm}:{vl}] offset:{LDS_ML}")
        a("s_mov_b64 exec, -1")
        load()
        a("s_waitcnt lgkmcnt(0)")
        a("s_barrier")
        self.stamp(7)
        vX = vD
        vMX = vD + 4
        a(f"ds_read_b64 v[{vX}:{vX+1}], v{vS} offset:{LDS_ML}")
        load()
        a("s_waitcnt lgkmcnt(0)")
        a(f"v_max_f32_dpp v{vMX}, v{vX}, v{vX} quad_perm:[1,0,3,2] {DPP}")
        a(f"v_max_f32_dpp v{vMX}, v{vMX}, v{vMX} quad_perm:[2,3,0,1] {DPP}")
        a(f"v_max_f32_dpp v{vMX}, v{vMX}, v{vMX} row_half_mirror {DPP}")
        a(f"v_sub_f32 v{vt0}, v{vm}, v{vMX}")
        a(f"v_sub_f32 v{vt1}, v{vX}, v{vMX}")
        a(f"v_mul_f32 v{vt0}, s{S_CE}, v{vt0}")
        a(f"v_mul_f32 v{vt1}, s{S_CE}, v{vt1}")
        a(f"v_exp_f32 v{vt0}, v{vt0}")
        a(f"v_exp_f32 v{vt1}, v{vt1}")
        for i in range(4):
            a(f"v_mul_f32 v{vSc+i}, v{vSc+i}, v{vt0}")
        for i in range(4):
            a(f"v_cvt_pk_bf16_f32 v{vSc+i}, v{vSc+i}, v{vSc+i}")
        vA = vK
        for i in range(4):
            for j in range(4):
                a(f"v_and_b32 v{vA+4*i+j}, v{vSc+i}, v{vM+j}")
        a(f"v_mul_f32 v{vMX+1}, v{vX+1}, v{vt1}")
        for ctl in ("quad_perm:[1,0,3,2]", "quad_perm:[2,3,0,1]", "row_half_mirror"):
            a(f"v_add_f32_dpp v{vMX+1}, v{vMX+1}, v{vMX+1} {ctl} {DPP}")
        a(f"v_and_or_b32 v{vMX}, v{vMX}, s{S_MASK}, v{vT}")
        a(f"v_and_or_b32 v{vMX+1}, v{vMX+1}, s{S_MASK}, v{vT}")
        a(f"v_mov_b32 v{vMX+2}, v{vMX}")
        a(f"v_mov_b32 v{vMX+3}, v{vMX+1}")
        self.stamp(4)
        vO = vD + 8
        a(f"v_lshrrev_b32 v{vS}, 5, v0")
        a(f"v_lshlrev_b32 v{vS}, 10, v{vS}")
        a(f"v_lshl_add_u32 v{vS}, v2, 5, v{vS}")
        a(f"v_and_b32 v{vS+1}, 16, v0")
        a(f"s_lshl_b32 s{S_OFF}, s{S_AW}, 11")
        a(f"v_add3_u32 v{vS}, v{vS}, v{vS+1}, s{S_OFF}")
        for i in range(4):
            for hf in range(2):
                n = 8 + 2 * i + hf
                while st["n"] <= n:
                    load()
                a(f"s_waitcnt vmcnt({st['n'] - n - 1})")
                while st["n"] - n - 1 < D and st["n"] < NL and n < 15:
                    load()
                if st["n"] >= 16 + self.opt.get("wburst", 0):
                    while st["n"] < NL:
                        load()
                o = vO + 4 * hf
                v = vV + 8 * i + 4 * hf
                c = "0" if i == 0 else f"v[{o}:{o+3}]"
                a(f"v_mfma_f32_16x16x32_bf16 v[{o}:{o+3}], v[{vA+4*i}:{vA+4*i+3}], v[{v}:{v+3}], {c}")
        while st["n"] < NL:
            load()
        self.stamp(8)
        a(f"ds_write_b128 v{vS}, v[{vO}:{vO+3}] offset:{LDS_O}")
        a(f"ds_write_b128 v{vS}, v[{vO+4}:{vO+7}] offset:{LDS_O+512}")
        a("s_waitcnt lgkmcnt(0)")
        a("s_barrier")
        self.stamp(9)
        lffn, lg, lml = self.lab("ffn"), self.lab("og"), self.lab("ml")
        a(f"s_cmp_ge_u32 s{S_AW}, 2")
        a(f"s_cbranch_scc1 {lml}")
        a(f"s_lshl_b32 s58, s{S_AW}, 10")
        a(f"v_lshl_add_u32 v3, v0, 4, s58")
        for w in range(8):
            a(f"ds_read_b128 v[{vV+4*w}:{vV+4*w+3}], v3 offset:{LDS_O + w*2048}")
        a(f"v_lshrrev_b32 v{vS}, 2, v0")
        a(f"v_lshlrev_b32 v{vS}, 11, v{vS}")
        a(f"v_and_b32 v{vS+1}, 3, v0")
        a(f"v_lshl_add_u32 v{vS}, v{vS+1}, 4, v{vS}")
        a(f"s_lshl_b32 s58, s{S_H}, 16")
        a(f"s_lshl_b32 s59, s{S_AW}, 15")
        a(f"s_add_u32 s58, s58, s59")
        a(f"s_lshl_b32 s59, s{S_C}, 6")
        a(f"s_add_u32 s58, s58, s59")
        a(f"s_add_u32 s58, s58, {WS_OP}")
        for w in range(0, 8, 2):
            a(f"s_waitcnt lgkmcnt({6-w})")
            for j in range(0, 4, 2):
                r = vV + 4 * w + j
                a(f"v_pk_add_f32 v[{r}:{r+1}], v[{r}:{r+1}], v[{r+4}:{r+5}]")
            if w in (2, 6):
                for j in range(0, 4, 2):
                    r = vV + 4 * (w - 2) + j
                    a(f"v_pk_add_f32 v[{r}:{r+1}], v[{r}:{r+1}], v[{r+8}:{r+9}]")
        for j in range(0, 4, 2):
            r = vV + j
            a(f"v_pk_add_f32 v[{r}:{r+1}], v[{r}:{r+1}], v[{r+16}:{r+17}]")
        self.tag4(vV, vT)
        self.pub(f"buffer_store_dwordx4 v[{vV}:{vV+3}], v{vS}, s[{R_WS}:{R_WS+3}], s58 offen")
        self.stamp(10)
        a(f"{lg}:")
        vOa, vOb, vMa, vMb = vK, vK + 4, vK + 8, vK + 12
        a(f"v_lshlrev_b32 v3, 4, v0")
        a(f"v_lshrrev_b32 v{vS}, 2, v0")
        a(f"v_lshlrev_b32 v{vS}, 4, v{vS}")
        a(f"s_lshl_b32 s58, s{S_H}, 16")
        a(f"s_lshl_b32 s59, s{S_C}, 11")
        a(f"s_add_u32 s58, s58, s59")
        a(f"s_add_u32 s58, s58, {WS_OP}")
        a(f"s_lshl_b32 s57, s{S_H}, 10")
        a(f"s_lshr_b32 s59, s{S_C}, 4")
        a(f"s_lshl_b32 s59, s59, 9")
        a(f"s_add_u32 s57, s57, s59")
        a(f"s_add_u32 s57, s57, {WS_ML}")

        def issue_o():
            a(f"buffer_load_dwordx4 v[{vMa}:{vMa+3}], v{vS}, s[{R_WS}:{R_WS+3}], s57 offen sc1")
            a(f"buffer_load_dwordx4 v[{vMb}:{vMb+3}], v{vS}, s[{R_WS}:{R_WS+3}], s57 offen offset:256 sc1")
            a(f"buffer_load_dwordx4 v[{vOa}:{vOa+3}], v3, s[{R_WS}:{R_WS+3}], s58 offen sc1")
            a(f"buffer_load_dwordx4 v[{vOb}:{vOb+3}], v3, s[{R_WS}:{R_WS+3}], s58 offen offset:1024 sc1")
        self.poll("o", issue_o, [vMa, vMb, vOa, vOb], vm)
        self.stamp(11)
        a(f"v_max_f32 v{vm}, v{vMa}, v{vMb}")
        a(f"v_max_f32_dpp v{vm}, v{vm}, v{vm} row_ror:4 {DPP}")
        a(f"v_max_f32_dpp v{vm}, v{vm}, v{vm} row_ror:8 {DPP}")
        self.xrow("v_max_f32", [vm], [vt0])
        a(f"v_sub_f32 v{vMa}, v{vMa}, v{vm}")
        a(f"v_sub_f32 v{vMb}, v{vMb}, v{vm}")
        a(f"v_mul_f32 v{vMa}, s{S_CE}, v{vMa}")
        a(f"v_mul_f32 v{vMb}, s{S_CE}, v{vMb}")
        a(f"v_exp_f32 v{vMa}, v{vMa}")
        a(f"v_exp_f32 v{vMb}, v{vMb}")
        a(f"v_mul_f32 v{vl}, v{vMa}, v{vMa+1}")
        for j in range(4):
            a(f"v_mul_f32 v{vOa+j}, v{vOa+j}, v{vMa}")
        a(f"v_fmac_f32 v{vl}, v{vMb}, v{vMb+1}")
        for j in range(4):
            a(f"v_fmac_f32 v{vOa+j}, v{vOb+j}, v{vMb}")
        a(f"v_add_f32_dpp v{vl}, v{vl}, v{vl} row_ror:4 {DPP}")
        self.tr4(vOa)
        a(f"v_add_f32_dpp v{vl}, v{vl}, v{vl} row_ror:8 {DPP}")
        a(f"v_add_f32_dpp v{vOa}, v{vOa}, v{vOa} row_ror:8 {DPP}")
        self.xrow("v_add_f32", [vl], [vt0])
        a(f"v_add_f32_dpp v{vOa}, v{vOa}, v{vOa} row_ror:4 {DPP}")
        a(f"v_rcp_f32 v{vl}, v{vl}")
        a(f"v_mul_f32 v{vOa}, v{vOa}, v{vl}")
        a(f"v_cvt_pk_bf16_f32 v{vOa}, v{vOa}, v{vOa}")
        vA2 = vV
        for i in range(4):
            for j in range(4):
                a(f"v_and_b32_dpp v{vA2+4*i+j}, v{vOa}, v{vM+j} quad_perm:[{i},{i},{i},{i}] {DPP}")
        a(f"s_mul_i32 s57, s{S_H}, {28*2048}")
        a(f"s_lshl_b32 s59, s{S_C}, 6")
        a(f"s_add_u32 s57, s57, s59")
        a(f"s_add_u32 s57, s57, {WS_S1}")
        a(f"s_mov_b32 s56, 11")
        lmv = self.lab("mv")
        a(f"{lmv}:")
        for i in range(4):
            c = "0" if i == 0 else f"v[{vD}:{vD+3}]"
            a(f"v_mfma_f32_16x16x32_bf16 v[{vD}:{vD+3}], v[{vA2+4*i}:{vA2+4*i+3}], v[{vWS+4*i}:{vWS+4*i+3}], {c}")
        a(f"s_and_b32 s58, s{S_AW}, 3")
        a(f"s_lshl_b32 s58, s58, 3")
        a(f"v_lshrrev_b32 v3, 1, v2")
        a(f"v_add_u32 v3, s58, v3")
        a(f"v_lshlrev_b32 v{vS}, s56, v3")
        a(f"v_and_b32 v3, 1, v0")
        a(f"v_lshl_add_u32 v{vS}, v3, 5, v{vS}")
        a(f"v_and_b32 v{vS+1}, 16, v0")
        a(f"v_add_u32 v{vS}, v{vS}, v{vS+1}")
        a(f"s_cmp_eq_u32 s58, 24")
        a(f"s_cselect_b32 exec_lo, 0x00ff00ff, -1")
        a(f"s_mov_b32 exec_hi, 0")
        self.tag4(vD, vT)
        self.pub(f"buffer_store_dwordx4 v[{vD}:{vD+3}], v{vS}, s[{R_WS}:{R_WS+3}], s57 offen")
        self.stamp(12)
        self.leave(0)
        a(f"{lml}:")
        a(f"s_cmp_ge_u32 s{S_AW}, 4")
        a(f"s_cbranch_scc1 {lffn}")
        a(f"s_cmp_lg_u32 s{S_AW}, 2")
        a(f"s_cbranch_scc1 {lg}")
        a(f"v_lshlrev_b32 v{vt0}, 6, v0")
        a(f"s_lshl_b32 s58, s{S_H}, 10")
        a(f"s_lshl_b32 s59, s{S_C}, 4")
        a(f"s_add_u32 s58, s58, s59")
        a(f"s_add_u32 s58, s58, {WS_ML}")
        a("s_mov_b64 exec, 0x101")
        self.pub(f"buffer_store_dwordx4 v[{vMX}:{vMX+3}], v{vt0}, s[{R_WS}:{R_WS+3}], s58 offen")
        a("s_mov_b64 exec, -1")
        a(f"s_branch {lg}")
        a(f"{lffn}:")
        a(f"s_cmp_lt_u32 s{S_C}, {FFN0}")
        a("s_cbranch_scc1 L_exit")

        def issue_g():
            a(f"buffer_load_dwordx4 v[{vG}:{vG+3}], v{vGO}, s[{R_WS}:{R_WS+3}], s{S_J} offen sc1")
        self.poll("g", issue_g, [vG], vm, first_issued=True, wide=False)
        self.stamp(11)
        for ctl in ("quad_perm:[1,0,3,2]", "quad_perm:[2,3,0,1]"):
            for j in range(4):
                a(f"v_add_f32_dpp v{vG+j}, v{vG+j}, v{vG+j} {ctl} {DPP}")
        a(f"v_and_b32 v{vt0}, 4, v0")
        a(f"v_cmp_eq_u32 vcc, 0, v{vt0}")
        a(f"v_mov_b32 v{vt1}, 0xff800000")
        a(f"v_cndmask_b32 v{vt0}, v{vt1}, 0, vcc")
        for j in range(4):
            self.rnd_bf16(vG + j)
        for j in range(4):
            a(f"v_max_f32 v{vG+j}, v{vG+j}, v{vt0}")
        for j in range(4):
            a(f"v_mul_f32_dpp v{vQ+j}, v{vG+j}, v{vG+j} row_half_mirror {DPP}")
        for j in range(4):
            a(f"v_cvt_pk_bf16_f32 v{vQ+j}, v{vQ+j}, v{vQ+j}")
        for i in range(4):
            for j in range(4):
                a(f"v_and_b32 v{vA2+4*i+j}, v{vQ+i}, v{vM+j}")
        a(f"s_mul_i32 s57, s{S_H}, {28*1024}")
        a(f"s_sub_u32 s59, s{S_C}, {FFN0}")
        a(f"s_lshl_b32 s59, s59, 6")
        a(f"s_add_u32 s57, s57, s59")
        a(f"s_add_u32 s57, s57, {WS_Y1}")
        a(f"s_mov_b32 s56, 10")
        a(f"s_branch {lmv}")

    def dump_stamps(self):
        a = self.a
        a("s_mov_b64 exec, -1")
        a(f"s_mov_b32 s{S_STAMP+2*14}, s{S_FAST}")
        a(f"s_mov_b32 s{S_STAMP+2*14+1}, 0")
        a(f"s_mov_b32 s{S_STAMP+2*15}, s{S_SPIN}")
        a(f"s_mov_b32 s{S_STAMP+2*15+1}, 0")
        self.stamp(13)
        a("s_waitcnt lgkmcnt(0)")
        a("s_sleep 100")
        a(f"s_add_u32 s40, s{S_WS}, {1 << 29}")
        a(f"s_addc_u32 s41, s{S_WS+1}, 0")
        a(f"s_mov_b32 s42, {256*10*NSTAMP*8}")
        a("s_mov_b32 s43, 0x20000")
        a(f"s_mul_i32 s44, s2, 10")
        a(f"s_add_u32 s44, s44, s{S_WAVE}")
        a(f"s_mul_i32 s44, s44, {NSTAMP*8}")
        a("v_mov_b32 v8, 0")
        a("s_mov_b64 exec, 1")
        for i in range(0, NSTAMP, 2):
            for q in range(4):
                a(f"v_mov_b32 v{10+q}, s{S_STAMP+2*i+q}")
            a(f"buffer_store_dwordx4 v[10:13], v8, s[40:43], s44 offen offset:{i*8}")
        a("s_waitcnt vmcnt(0)")


if __name__ == "__main__":
    out = "cdna_kernels/" + NAME + ".s"
    open(out, "w").write(Gen(False).build())
    open("k_st.s", "w").write(Gen(True).build())
    B = dict(npre=6, wburst=9)
    V = {
        "base": dict(B),
        "nopt": dict(B, pretouch=0, qtouch=0),
        "ptnt": dict(B, ptflag="nt"),
        "nob": dict(B, nocopyb=1, qalt=0xffff),
        "dl20": dict(B, qdelay=20),
        "dl32": dict(B, qdelay=32),
        "nob_dl20_ptnt": dict(B, nocopyb=1, qalt=0xffff, qdelay=20, ptflag="nt"),
        "d5": dict(B, depth=5),
    }
    for n, o in V.items():
        open(f"kv_{n}.s", "w").write(Gen(True, o).build())
```
